```python
import torch

def _softmax(x, axis=-1):
    return torch.softmax(x, dim=axis)
def _gelu(x):
    return torch.nn.functional.gelu(x, approximate="tanh")
def _silu(x):
    return torch.nn.functional.silu(x)
def _sigmoid(x):
    return torch.sigmoid(x)
def _layernorm(x, axis=-1, eps=1e-5):
    m = x.mean(dim=axis, keepdim=True)
    v = x.var(dim=axis, keepdim=True, unbiased=False)
    return (x - m) / torch.sqrt(v + eps)
def _scatter_add(tgt, idx, src, axis=0):
    return tgt.clone().index_add_(axis, idx, src)
def _segment_sum(src, seg, n):
    out = torch.zeros((n,) + src.shape[1:], dtype=src.dtype)
    return out.index_add_(0, seg, src)
def _pad(x, pw):
    flat = tuple(v for pair in reversed(pw) for v in pair)
    return torch.nn.functional.pad(x, flat)

kernel_name = 'standalone__sliding_block_cached__decode'

def setup_inputs():

    _w = (lambda a: (lambda t: t.to(torch.bfloat16) if t.is_floating_point() else t)(torch.as_tensor(a)))
    B, Sq, D = 2, 1, 640
    Hq, Hkv, Sk, Dh = 32, 32, 16384, 128
    assert Hq % Hkv == 0, (Hq, Hkv)
    return {
        "x": _w((lambda *s: torch.randn(*s, dtype=torch.bfloat16) * 0.8)(B, Sq, D)),
        "k_cache": _w((lambda *s: torch.randn(*s, dtype=torch.bfloat16) * 0.8)(B, Hkv, Sk, Dh)),
        "v_cache": _w((lambda *s: torch.randn(*s, dtype=torch.bfloat16) * 0.05)(B, Hkv, Sk, Dh)),
        "wq": _w((lambda *s: torch.randn(*s, dtype=torch.bfloat16) * 0.8)(D, Hq * Dh) * (D ** -0.5)),
        "wo": _w((lambda *s: torch.randn(*s, dtype=torch.bfloat16) * 0.05)(Hq * Dh, D) * ((Hq * Dh) ** -0.5)),
    }

def reference(x, k_cache, v_cache, wq, wo):
    B, Sq, D = x.shape
    Hq, Dh = 32, 128
    Hkv, Sk = k_cache.shape[1], k_cache.shape[2]
    W = min(4096, max(256, Sk // 4))
    rep = Hq // Hkv
    q = (lambda x, *d: x.permute(*d))((x @ wq).reshape(B, Sq, Hq, Dh), 0, 2, 1, 3)
    k = (lambda x, n, axis: torch.repeat_interleave(x, n, dim=axis))(k_cache[:, :, Sk - W:, :], rep, axis=1)
    v = (lambda x, n, axis: torch.repeat_interleave(x, n, dim=axis))(v_cache[:, :, Sk - W:, :], rep, axis=1)
    scores = torch.einsum("bhqd,bhkd->bhqk", q, k) * (Dh ** -0.5)
    p = _softmax(scores, axis=-1)
    o = torch.einsum("bhqk,bhkd->bhqd", p, v)
    return (lambda x, *d: x.permute(*d))(o, 0, 2, 1, 3).reshape(B, Sq, Hq * Dh) @ wo
```

```python
import re

_REG = re.compile(r'\b([vsa])(\d+)\b|\b([vsa])\[(\d+):(\d+)\]|\b(vcc|exec|m0)\b')
TRANS = ('v_exp_f32', 'v_log_f32', 'v_rcp_f32', 'v_rsq_f32', 'v_sqrt_f32', 'v_sin_f32', 'v_cos_f32')


def regs_of(op):
    out = []
    for m in _REG.finditer(op):
        if m.group(1):
            out.append(m.group(1) + m.group(2))
        elif m.group(3):
            out += [m.group(3) + str(i) for i in range(int(m.group(4)), int(m.group(5)) + 1)]
        else:
            out.append(m.group(6))
    return out


def split_ops(rest):
    ops, depth, cur = [], 0, ''
    for ch in rest:
        if ch == '[':
            depth += 1
        if ch == ']':
            depth -= 1
        if ch == ',' and depth == 0:
            ops.append(cur.strip())
            cur = ''
        else:
            cur += ch
    if cur.strip():
        ops.append(cur.strip())
    return ops


class Ins:
    pass


def decode(text):
    t = text.split(';')[0].strip()
    parts = t.split(None, 1)
    mn = parts[0]
    ops = split_ops(parts[1]) if len(parts) > 1 else []
    i = Ins()
    i.mn = mn
    i.base = re.sub(r'_(e32|e64|dpp|sdwa)$', '', mn)
    i.w, i.r, i.srcc, i.ab = set(), set(), set(), set()
    i.kind = 'other'
    i.dpp = mn.endswith('_dpp')
    i.widestore = set()
    first = lambda s: s.split()[0] if s else s
    if mn.startswith('v_mfma'):
        i.kind = 'mfma'
        i.w = set(regs_of(ops[0]))
        i.ab = set(regs_of(ops[1])) | set(regs_of(ops[2]))
        i.srcc = set(regs_of(first(ops[3])))
        i.r = i.ab | i.srcc
    elif mn.startswith('v_'):
        i.kind = 'valu'
        srcs = [first(o) if k == len(ops) - 1 else o for k, o in enumerate(ops)]
        if 'permlane' in mn and 'swap' in mn:
            i.w = set(regs_of(srcs[0])) | set(regs_of(srcs[1]))
            i.r = set(i.w)
        else:
            i.w = set(regs_of(srcs[0]))
            k0 = 1
            if '_co_' in mn:
                i.w |= set(regs_of(srcs[1]))
                k0 = 2
            for o in srcs[k0:]:
                i.r |= set(regs_of(o))
            if i.base in ('v_fmac_f32', 'v_dot2c_f32_bf16', 'v_writelane_b32'):
                i.r |= i.w
            if mn.startswith('v_dot'):
                i.kind = 'dot'
                i.ab = set(regs_of(srcs[1])) | set(regs_of(srcs[2]))
    elif mn.startswith(('buffer_', 'global_')):
        i.kind = 'vmem'
        lds = ' lds' in t or '_lds_' in mn
        allr = [regs_of(first(o) if k == len(ops) - 1 else o) for k, o in enumerate(ops)]
        if 'load' in mn and not lds:
            i.w = set(allr[0])
            for a in allr[1:]:
                i.r |= set(a)
        else:
            for a in allr:
                i.r |= set(a)
            if lds:
                i.r.add('m0')
            if 'store' in mn and ('x4' in mn or 'x3' in mn):
                i.widestore = set(allr[0] if mn.startswith('buffer_') else allr[1])
            if 'atomic' in mn and ' sc0' in t:
                i.w = set(allr[0])
    elif mn.startswith('ds_'):
        i.kind = 'ds'
        allr = [regs_of(first(o) if k == len(ops) - 1 else o) for k, o in enumerate(ops)]
        if 'read' in mn or 'permute' in mn or 'swizzle' in mn or '_rtn_' in mn:
            i.w = set(allr[0])
            for a in allr[1:]:
                i.r |= set(a)
        else:
            for a in allr:
                i.r |= set(a)
    elif mn.startswith('s_'):
        i.kind = 'salu'
        if ops and not mn.startswith(('s_cmp', 's_cbranch', 's_branch', 's_waitcnt', 's_nop', 's_sleep',
                                      's_barrier', 's_setprio', 's_endpgm', 's_bitcmp')):
            i.w = set(regs_of(ops[0]))
            for o in ops[1:]:
                i.r |= set(regs_of(o))
        else:
            for o in ops:
                i.r |= set(regs_of(o))
    return i


def is_vg(r):
    return r[0] in 'va' and r != 'vcc'


def need(p, c):
    n = 0
    pv = p.kind in ('valu', 'dot')
    cv = c.kind in ('valu', 'dot')
    pwv = {r for r in p.w if is_vg(r)}
    pws = {r for r in p.w if not is_vg(r)}
    if pv:
        if c.dpp and pwv & c.r:
            n = max(n, 2)
        if c.kind == 'mfma' and pwv & c.r:
            n = max(n, 2)
        if 'permlane' in c.mn and pwv & c.r:
            n = max(n, 2)
        if c.base in ('v_readlane_b32', 'v_readfirstlane_b32') and pwv & c.r:
            n = max(n, 1)
        if p.base in TRANS and cv and pwv & c.r:
            n = max(n, 1)
        if pws:
            if cv and pws & c.r:
                n = max(n, 4 if 'lane' in c.mn else 2)
            if c.kind == 'vmem' and pws & c.r:
                n = max(n, 5)
            if c.kind == 'salu' and pws & c.r:
                n = max(n, 1)
    if p.kind == 'dot':
        if c.base == p.base:
            if pwv & c.ab:
                n = max(n, 3)
        elif pwv & (c.r | c.w):
            n = max(n, 3)
    if p.kind == 'mfma':
        big = '32x32' in p.mn
        if c.kind == 'mfma':
            if p.w & c.ab:
                n = max(n, 12 if big else 8)
            if p.w & c.srcc and p.w != c.srcc:
                n = max(n, 10 if big else 6)
            if p.w & c.w and p.w != c.srcc:
                n = max(n, 12 if big else 8)
        elif p.w & (c.r | c.w):
            n = max(n, 12 if big else 8)
        if cv and p.srcc & c.w:
            n = max(n, 7 if big else 3)
    if p.widestore and p.widestore & c.w:
        n = max(n, 2)
    if p.kind == 'salu' and 'm0' in p.w and c.kind in ('vmem', 'ds') and 'm0' in c.r:
        n = max(n, 1)
    return n


class Asm:
    def __init__(self):
        self.lines = []
        self.hist = []
        self.pos = 0
        self.vm = []
        self.nops = 0
        self.issued = set()

    def raw(self, text):
        self.lines.append(text)

    def comment(self, text):
        self.lines.append('    ; ' + text)

    def label(self, name):
        self.lines.append(name + ':')

    def __call__(self, text, tag=None):
        i = decode(text)
        if i.mn == 's_nop':
            self.lines.append('    ' + text)
            self.pos += int(text.split()[1]) + 1
            return
        pad = 0
        for (pos, p) in self.hist[-24:]:
            gap = self.pos - pos - 1
            pad = max(pad, need(p, i) - gap)
        if pad > 0:
            self.lines.append('    s_nop %d' % (pad - 1))
            self.pos += pad
            self.nops += pad
        self.lines.append('    ' + text)
        self.hist.append((self.pos, i))
        self.pos += 1
        if i.kind == 'vmem':
            self.vm.append((tag, 'load' in i.mn))
            self.issued.add(tag)

    def wait_vm(self, tag):
        hits = [k for k, (t, _) in enumerate(self.vm) if t == tag]
        if not hits:
            assert tag in self.issued, tag
            return
        idx = max(hits)
        n = sum(1 for (_, ld) in self.vm[idx + 1:] if ld)
        assert len(self.vm) <= 63, len(self.vm)
        self('s_waitcnt vmcnt(%d)' % n)
        self.vm = self.vm[idx + 1:]

    def wait_vm_all(self):
        assert len(self.vm) <= 63, len(self.vm)
        self('s_waitcnt vmcnt(0)')
        self.vm = []

    def text(self):
        return '\n'.join(self.lines) + '\n'
```

```python
import sys
from asmlib import Asm

NAME = 'standalone__sliding_block_cached__decode'
HEADER = open('cdna_kernels/%s.s.ref' % NAME).read().split('; Override launch')[0]

ML_OFF = 4096
Y_OFF = 65536
STAMP_OFF = 1 << 22
WS_BYTES = (1 << 22) + 256 * 8 * 64
LDS_Q, LDS_O, LDS_Y = 0, 4096, 8704
O_STRIDE = 544


def gen(R=24, G=4, kvflag=' nt', wflag='', k_first=4, k_per_w=1, wo_start=0, wo_every=1,
        poll_at=60, stamps=False, sleep=2):
    a = Asm()
    sW, sH, sB, sS = 20, 21, 22, 23
    K, V, WQ, WO, X, WS, OUT = 24, 28, 32, 36, 40, 44, 48
    sOff, sT, sT0, sT1, sT2, sCS, sSelLo, sSelHi, sSpin = 52, 53, 54, 55, 56, 57, 58, 59, 60
    sTmp, sBH, sXcd, sJ, sTmp2 = 61, 62, 63, 64, 65
    sStamp = 66
    srd = lambda n: 's[%d:%d]' % (n, n + 3)
    vr = lambda n, k=4: 'v[%d:%d]' % (n, n + k - 1)
    vLane, vKV, vWQ, vMask, vQ, vAcc, vU, vA, vX = 1, 2, 3, 4, 8, 12, 16, 24, 32
    vWO, vC, vG, vT = 42, 43, 44, 45
    vQw, vQr, vOw, vOr, vYw, vYr, vYg, vMLs, vMLl, vCo, vCst, vM, vScale, vTag = range(48, 62)
    vWb, vRing = 64, 144
    assert vRing + 4 * R <= 256
    nst = [0]

    def stamp():
        if stamps:
            a('s_memrealtime s[%d:%d]' % (sStamp + 2 * nst[0], sStamp + 2 * nst[0] + 1))
        nst[0] += 1

    cur_off = [None]

    def soff(v):
        if v == 0:
            return '0'
        if cur_off[0] != v:
            a('s_mov_b32 s%d, 0x%x' % (sOff, v))
            cur_off[0] = v
        return 's%d' % sOff

    def kv_load(n):
        i = n % 32
        blk, within = i // G, i % G
        off = blk * 8 * G * 1024 + within * 1024
        so, imm = off - (off % 4096 if G >= 4 else within * 1024), (off % 4096 if G >= 4 else within * 1024)
        s = soff(so)
        a('buffer_load_dwordx4 %s, v%d, %s, %s offen offset:%d%s' %
          (vr(vRing + 4 * (n % R)), vKV, srd(K if n < 32 else V), s, imm, kvflag), tag=('kv', n))

    def wq_load(t):
        s = soff(t * 8192)
        a('buffer_load_dwordx4 %s, v%d, %s, %s offen%s' % (vr(vWb + 4 * t), vWQ, srd(WQ), s, wflag), tag=('wq', t))

    def wo_load(n):
        off = n * 256
        s = soff(off - off % 4096)
        a('buffer_load_dwordx4 %s, v%d, %s, %s offen offset:%d%s' %
          (vr(vWb + 4 * n), vWO, srd(WO), s, off % 4096, wflag), tag=('wo', n))

    def dpp(op, d, s0, s1, ctrl, bank=0xf):
        a('%s_dpp v%d, v%d, v%d %s row_mask:0xf bank_mask:0x%x' % (op, d, s0, s1, ctrl, bank))

    def rows_reduce(op, v, tmp, both=True):
        a('v_mov_b32 v%d, v%d' % (tmp, v))
        a('v_permlane16_swap_b32 v%d, v%d' % (v, tmp))
        a('%s v%d, v%d, v%d' % (op, v, v, tmp))
        if both:
            a('v_mov_b32 v%d, v%d' % (tmp, v))
            a('v_permlane32_swap_b32 v%d, v%d' % (v, tmp))
            a('%s v%d, v%d, v%d' % (op, v, v, tmp))

    a('s_cmp_ge_u32 s2, 0x100')
    a('s_cbranch_scc1 L_end')
    a('s_load_dwordx16 s[4:19], s[0:1], 0')
    stamp()
    a('v_lshrrev_b32 v%d, 6, v0' % vT)
    a('v_and_b32 v%d, 63, v0' % vLane)
    a('v_readfirstlane_b32 s%d, v%d' % (sW, vT))
    a('s_and_b32 s%d, s2, 7' % sXcd)
    a('s_lshr_b32 s%d, s2, 3' % sJ)
    a('s_and_b32 s%d, s%d, 3' % (sH, sJ))
    a('s_lshl2_add_u32 s%d, s%d, s%d' % (sH, sXcd, sH))
    a('s_lshr_b32 s%d, s2, 7' % sB)
    a('s_bfe_u32 s%d, s2, 0x20005' % sS)
    a('s_lshl_b32 s%d, s%d, 5' % (sBH, sB))
    a('s_add_u32 s%d, s%d, s%d' % (sBH, sBH, sH))
    a('s_lshl_b32 s%d, s%d, 22' % (sTmp, sBH))
    a('s_lshl_b32 s%d, s%d, 18' % (sTmp2, sS))
    a('s_add_u32 s%d, s%d, s%d' % (sTmp, sTmp, sTmp2))
    a('s_add_u32 s%d, s%d, 0x300000' % (sTmp, sTmp))
    a('v_lshlrev_b32 v%d, 4, v%d' % (vKV, vLane))
    a('v_mul_u32_u24 v%d, 0x%x, v%d' % (vT + 1, G * 1024, vT))
    a('v_add_u32 v%d, v%d, v%d' % (vKV, vKV, vT + 1))
    a('v_and_b32 v%d, 15, v0' % vC)
    a('v_bfe_u32 v%d, v0, 4, 2' % vG)
    a('v_lshrrev_b32 v%d, 4, v0' % (vT + 1))
    a('v_mul_u32_u24 v%d, 40, v%d' % (vT + 2, vT + 1))
    a('v_mul_u32_u24 v%d, 0x%x, v%d' % (vWQ, 20 * 8192, vT + 1))
    a('v_lshl_add_u32 v%d, v%d, 4, v%d' % (vWQ, vC, vWQ))
    a('v_mul_u32_u24 v%d, 0x%x, v%d' % (vWO, 4 * 1280, vT + 1))
    a('v_lshl_add_u32 v%d, v%d, 4, v%d' % (vWO, vC, vWO))
    for r_, sz in ((K, 0x40000), (V, 0x40000), (WQ, 639 * 8192 + 256), (WO, 128 * 1280), (X, 1280),
                   (WS, WS_BYTES), (OUT, 2560)):
        a('s_mov_b32 s%d, 0x%x' % (r_ + 2, sz))
        a('s_mov_b32 s%d, 0x20000' % (r_ + 3))
    a('s_mul_i32 s%d, s%d, 1280' % (sTmp2, sB))
    a('s_lshl_b32 s%d, s%d, 8' % (sT0, sH))
    a('s_mul_i32 s%d, s%d, 0x%x' % (sT1, sH, 128 * 1280))
    a('s_waitcnt lgkmcnt(0)')
    a('s_add_u32 s%d, s6, s%d' % (K, sTmp))
    a('s_addc_u32 s%d, s7, 0' % (K + 1))
    a('s_add_u32 s%d, s4, s%d' % (X, sTmp2))
    a('s_addc_u32 s%d, s5, 0' % (X + 1))
    a('s_add_u32 s%d, s10, s%d' % (WQ, sT0))
    a('s_addc_u32 s%d, s11, 0' % (WQ + 1))
    nk = 0
    for _ in range(min(k_first, R)):
        kv_load(nk)
        nk += 1
    a('buffer_load_dwordx4 %s, v%d, %s, 0 offen' % (vr(vX), vT + 2, srd(X)), tag='x0')
    a('buffer_load_dwordx4 %s, v%d, %s, 0 offen offset:16' % (vr(vX + 4), vT + 2, srd(X)), tag='x1')
    a('buffer_load_dwordx2 %s, v%d, %s, 0 offen offset:32' % (vr(vX + 8, 2), vT + 2, srd(X)), tag='x2')
    acc = 0.0
    for t in range(20):
        wq_load(t)
        acc += k_per_w
        while acc >= 1 and nk < R:
            kv_load(nk)
            nk += 1
            acc -= 1
    while nk < R:
        kv_load(nk)
        nk += 1
    stamp()
    a('s_load_dword s%d, s[18:19], 0' % sT)
    a('s_add_u32 s%d, s8, s%d' % (V, sTmp))
    a('s_addc_u32 s%d, s9, 0' % (V + 1))
    a('s_add_u32 s%d, s12, s%d' % (WO, sT1))
    a('s_addc_u32 s%d, s13, 0' % (WO + 1))
    a('s_mov_b32 s%d, s18' % WS)
    a('s_mov_b32 s%d, s19' % (WS + 1))
    a('s_mov_b32 s%d, s14' % OUT)
    a('s_mov_b32 s%d, s15' % (OUT + 1))
    a('s_mov_b32 s%d, 0x3e0293ee' % sCS)
    a('s_mov_b32 s%d, 0x01000100' % sSelLo)
    a('s_mov_b32 s%d, 0x03020302' % sSelHi)
    a('s_mov_b32 s%d, 0x10000' % sSpin)
    a('v_and_b32 v%d, 1, v0' % vT)
    a('v_lshlrev_b32 v%d, 4, v%d' % (vT, vT))
    a('v_mov_b32 v%d, 0xffff' % (vT + 1))
    a('v_lshlrev_b32 v%d, v%d, v%d' % (vT, vT, vT + 1))
    a('v_bfe_u32 v%d, v0, 1, 2' % (vT + 1))
    for r in range(4):
        a('v_cmp_eq_u32 vcc, %d, v%d' % (r, vT + 1))
        a('v_cndmask_b32 v%d, 0, v%d, vcc' % (vMask + r, vT))
    a('v_and_b32 v%d, 31, v0' % vT)
    a('v_lshlrev_b32 v%d, 4, v%d' % (vT, vT))
    a('s_lshl_b32 s%d, s%d, 9' % (sTmp, sW))
    a('v_add_u32 v%d, s%d, v%d' % (vQw, sTmp, vT))
    a('v_lshlrev_b32 v%d, 4, v%d' % (vQr, vC))
    a('s_mul_i32 s%d, s%d, 2560' % (sTmp, sW))
    a('v_add_u32 v%d, s%d, v%d' % (vYw, sTmp, vT))
    a('s_lshl_b32 s%d, s%d, 9' % (sTmp, sBH))
    a('s_add_u32 s%d, s%d, %d' % (sTmp, sTmp, ML_OFF))
    a('v_add_u32 v%d, s%d, v%d' % (vMLl, sTmp, vT))
    a('s_lshl_b32 s%d, s%d, 3' % (sTmp2, sS))
    a('s_add_u32 s%d, s%d, s%d' % (sTmp2, sTmp2, sW))
    a('s_lshl4_add_u32 s%d, s%d, s%d' % (sTmp, sTmp2, sTmp))
    a('v_mov_b32 v%d, s%d' % (vMLs, sTmp))
    a('v_and_b32 v%d, 1, v%d' % (vT, vG))
    a('v_lshlrev_b32 v%d, 4, v%d' % (vT, vT))
    a('v_lshl_add_u32 v%d, v%d, 5, v%d' % (vT, vC, vT))
    a('s_mul_i32 s%d, s%d, %d' % (sTmp, sW, O_STRIDE))
    a('v_add_u32 v%d, s%d, v%d' % (vOw, sTmp, vT))
    a('v_and_b32 v%d, 7, v0' % vT)
    a('v_mul_u32_u24 v%d, %d, v%d' % (vT, O_STRIDE, vT))
    a('v_lshl_add_u32 v%d, v%d, 4, v%d' % (vT, vG, vT))
    a('s_lshl_b32 s%d, s%d, 6' % (sTmp, sW))
    a('v_add_u32 v%d, s%d, v%d' % (vOr, sTmp, vT))
    a('v_lshlrev_b32 v%d, 4, v0' % vYr)
    a('s_lshl2_add_u32 s%d, s%d, s%d' % (sTmp, sBH, sS))
    a('s_mul_i32 s%d, s%d, 2560' % (sTmp, sTmp))
    a('s_add_u32 s%d, s%d, %d' % (sTmp, sTmp, Y_OFF))
    a('v_add_u32 v%d, s%d, v%d' % (vYg, sTmp, vYr))
    a('v_mov_b32 v%d, 0x3ff' % vTag)
    a('s_mul_i32 s%d, s%d, 20' % (sTmp, sXcd))
    a('s_add_u32 s%d, s%d, s%d' % (sTmp, sTmp, sJ))
    a('s_cmp_ge_u32 s%d, 80' % sTmp)
    a('s_cselect_b32 s%d, 80, 0' % sTmp2)
    a('s_sub_u32 s%d, s%d, s%d' % (sTmp, sTmp, sTmp2))
    a('v_and_b32 v%d, 1, v0' % vT)
    a('v_lshl_add_u32 v%d, s%d, 1, v%d' % (vT, sTmp, vT))
    a('v_lshrrev_b32 v%d, 1, v%d' % (vT + 1, vLane))
    a('v_mul_u32_u24 v%d, 2560, v%d' % (vT + 1, vT + 1))
    a('v_lshl_add_u32 v%d, v%d, 4, v%d' % (vCo, vT, vT + 1))
    a('s_mul_i32 s%d, s%d, %d' % (sTmp, sTmp2, 128 * 2560 // 80))
    a('s_add_u32 s%d, s%d, %d' % (sTmp, sTmp, Y_OFF))
    a('v_add_u32 v%d, s%d, v%d' % (vCo, sTmp, vCo))
    a('v_lshrrev_b32 v%d, 5, v%d' % (vCst, vT))
    a('v_lshlrev_b32 v%d, 7, v%d' % (vCst, vCst))
    a('v_and_b32 v%d, 15, v%d' % (vT + 1, vT))
    a('v_lshl_add_u32 v%d, v%d, 3, v%d' % (vCst, vT + 1, vCst))
    a('v_bfe_u32 v%d, v%d, 4, 1' % (vT + 1, vT))
    a('v_lshl_add_u32 v%d, v%d, 2, v%d' % (vCst, vT + 1, vCst))
    a('v_bfe_u32 v%d, v0, 2, 1' % (vT + 1))
    a('v_lshl_add_u32 v%d, v%d, 1, v%d' % (vCst, vT + 1, vCst))
    a('v_bfe_u32 v%d, v0, 3, 1' % (vT + 1))
    a('v_add_u32 v%d, v%d, v%d' % (vCst, vCst, vT + 1))
    a('s_lshl_b32 s%d, s%d, 3' % (sTmp2, sTmp2))
    a('v_add_u32 v%d, s%d, v%d' % (vCst, sTmp2, vCst))
    a('v_lshlrev_b32 v%d, 1, v%d' % (vCst, vCst))
    a('s_waitcnt lgkmcnt(0)')
    a('s_mul_i32 s%d, s%d, 0x9e3779b1' % (sT, sT))
    a('s_add_u32 s%d, s%d, 0x7f4a7c15' % (sT, sT))
    a('s_and_b32 s%d, s%d, 0x3ff' % (sT0, sT))
    a('s_bfe_u32 s%d, s%d, 0xa000a' % (sT1, sT))
    a('s_bfe_u32 s%d, s%d, 0xa0014' % (sT2, sT))

    a.wait_vm('x2')

    def xdup(t):
        a('v_perm_b32 v%d, v%d, v%d, s%d' % (vT + (t & 1), vX + t // 2, vX + t // 2, sSelHi if t & 1 else sSelLo))

    xdup(0)
    for t in range(20):
        for r in range(4):
            a('v_and_b32 v%d, v%d, v%d' % (vA + r, vT + (t & 1), vMask + r))
        if t < 19:
            xdup(t + 1)
        a.wait_vm(('wq', t))
        a('v_mfma_f32_16x16x32_bf16 %s, %s, %s, %s' % (vr(vAcc), vr(vA), vr(vWb + 4 * t), vr(vAcc) if t else '0'))
    a('ds_write_b128 v%d, %s offset:%d' % (vQw, vr(vAcc), LDS_Q))
    a('s_waitcnt lgkmcnt(0)')
    a('s_barrier')
    for w in range(8):
        a('ds_read_b128 %s, v%d offset:%d' % (vr(vWb + 8 * w), vQr, LDS_Q + 512 * w))
        a('ds_read_b128 %s, v%d offset:%d' % (vr(vWb + 8 * w + 4), vQr, LDS_Q + 512 * w + 256))
    a('s_waitcnt lgkmcnt(0)')
    for step in (4, 2, 1):
        for w in range(step):
            for k in range(0, 8, 2):
                x0, x1 = vWb + 8 * w + k, vWb + 8 * (w + step) + k
                a('v_pk_add_f32 %s, %s, %s' % (vr(x0, 2), vr(x0, 2), vr(x1, 2)))
    for k in range(4):
        a('v_cvt_pk_bf16_f32 v%d, v%d, v%d' % (vQ + k, vWb + 2 * k, vWb + 2 * k + 1))
    stamp()

    nwo = [0]
    polled = [False]
    vPoll = vX + 4

    def refill(n):
        if n >= wo_start and (n - wo_start) % wo_every == 0 and nwo[0] < 20:
            wo_load(nwo[0])
            nwo[0] += 1
        m = n + R
        if m >= poll_at and n >= 32 and not polled[0]:
            a('buffer_load_dwordx4 %s, v%d, %s, 0 offen sc1' % (vr(vPoll), vMLl, srd(WS)), tag='poll')
            polled[0] = True
        if m < 64:
            kv_load(m)

    vS, vTT = vX, vX + 8
    pend = []
    for n in range(32):
        a.wait_vm(('kv', n))
        rb = vRing + 4 * (n % R)
        s = vS + (n & 7)
        for k in range(4):
            a('v_dot2_f32_bf16 v%d, v%d, v%d, %s' % (s, rb + k, vQ + k, 'v%d' % s if k else '0'))
            if pend and k in (0, 2):
                pend.pop(0)()
        refill(n)
        if n % 4 == 3:
            assert not pend
            s0 = vS + (n & 4)
            u = vU + n // 4
            pend = [
                lambda s0=s0: dpp('v_add_f32', vTT, s0, s0, 'row_ror:8', 0x3),
                lambda s0=s0: dpp('v_add_f32', vTT, s0 + 1, s0 + 1, 'row_ror:8', 0xc),
                lambda s0=s0: dpp('v_add_f32', vTT + 1, s0 + 2, s0 + 2, 'row_ror:8', 0x3),
                lambda s0=s0: dpp('v_add_f32', vTT + 1, s0 + 3, s0 + 3, 'row_ror:8', 0xc),
                lambda u=u: dpp('v_add_f32', u, vTT, vTT, 'row_shl:4', 0x5),
                lambda u=u: dpp('v_add_f32', u, vTT + 1, vTT + 1, 'row_shr:4', 0xa),
                lambda u=u: dpp('v_add_f32', u, u, u, 'quad_perm:[1,0,3,2]'),
                lambda u=u: dpp('v_add_f32', u, u, u, 'quad_perm:[2,3,0,1]'),
            ]
    while pend:
        pend.pop(0)()
    stamp()
    a('v_max3_f32 v%d, v%d, v%d, v%d' % (vM, vU, vU + 1, vU + 2))
    a('v_max3_f32 v%d, v%d, v%d, v%d' % (vM, vM, vU + 3, vU + 4))
    a('v_max3_f32 v%d, v%d, v%d, v%d' % (vM, vM, vU + 5, vU + 6))
    a('v_max_f32 v%d, v%d, v%d' % (vM, vM, vU + 7))
    dpp('v_max_f32', vM, vM, vM, 'row_ror:4')
    dpp('v_max_f32', vM, vM, vM, 'row_ror:8')
    rows_reduce('v_max_f32', vM, vT)
    a('v_mul_f32 v%d, s%d, v%d' % (vM, sCS, vM))
    for k in range(8):
        a('v_fma_f32 v%d, v%d, s%d, -v%d' % (vU + k, vU + k, sCS, vM))
    for k in range(8):
        a('v_exp_f32 v%d, v%d' % (vU + k, vU + k))
    vML = vX
    a('v_add_f32 v%d, v%d, v%d' % (vML + 2, vU, vU + 1))
    for k in range(2, 8):
        a('v_add_f32 v%d, v%d, v%d' % (vML + 2, vML + 2, vU + k))
    for k in range(8):
        a('v_cvt_pk_bf16_f32 v%d, v%d, v%d' % (vU + k, vU + k, vU + k))
    dpp('v_add_f32', vML + 2, vML + 2, vML + 2, 'row_ror:4')
    a('v_mov_b32 v%d, v%d' % (vML, vM))
    a('v_mov_b32 v%d, s%d' % (vML + 1, sT))
    dpp('v_add_f32', vML + 2, vML + 2, vML + 2, 'row_ror:8')
    a('v_mov_b32 v%d, s%d' % (vML + 3, sT))
    rows_reduce('v_add_f32', vML + 2, vT)
    a('s_mov_b64 exec, 1')
    a('buffer_store_dwordx4 %s, v%d, %s, 0 offen sc1' % (vr(vML), vMLs, srd(WS)), tag='mlst')
    a('s_mov_b64 exec, -1')

    bank_of = [0, 2, 1, 3]

    def build_a(i):
        for r in range(4):
            a('v_and_b32_dpp v%d, v%d, v%d row_newbcast:%d row_mask:0xf bank_mask:0xf' %
              (vA + 4 * (i & 1) + r, vU + i // 4, vMask + r, 4 * bank_of[i % 4]))

    def scale_code():
        a.comment('combine the 32 wave statistics of this (batch, head)')
        a.label('L_ml_check')
        a('v_xor_b32 v%d, s%d, v%d' % (vT, sT, vPoll + 1))
        a('v_xor_b32 v%d, s%d, v%d' % (vT + 1, sT, vPoll + 3))
        a('v_or_b32 v%d, v%d, v%d' % (vT, vT, vT + 1))
        a('v_cmp_ne_u32 vcc, 0, v%d' % vT)
        a('s_cbranch_vccnz L_ml_retry')
        a.label('L_ml_ok')
        vMM = vT + 1
        dpp('v_max_f32', vMM, vPoll, vPoll, 'quad_perm:[1,0,3,2]')
        dpp('v_max_f32', vMM, vMM, vMM, 'quad_perm:[2,3,0,1]')
        dpp('v_max_f32', vMM, vMM, vMM, 'row_ror:4')
        dpp('v_max_f32', vMM, vMM, vMM, 'row_ror:8')
        rows_reduce('v_max_f32', vMM, vT, both=False)
        a('v_sub_f32 v%d, v%d, v%d' % (vPoll, vPoll, vMM))
        a('v_sub_f32 v%d, v%d, v%d' % (vScale, vM, vMM))
        a('v_exp_f32 v%d, v%d' % (vPoll, vPoll))
        a('v_exp_f32 v%d, v%d' % (vScale, vScale))
        a('v_mul_f32 v%d, v%d, v%d' % (vPoll, vPoll, vPoll + 2))
        dpp('v_add_f32', vPoll, vPoll, vPoll, 'quad_perm:[1,0,3,2]')
        dpp('v_add_f32', vPoll, vPoll, vPoll, 'quad_perm:[2,3,0,1]')
        dpp('v_add_f32', vPoll, vPoll, vPoll, 'row_ror:4')
        dpp('v_add_f32', vPoll, vPoll, vPoll, 'row_ror:8')
        rows_reduce('v_add_f32', vPoll, vT, both=False)
        a('v_rcp_f32 v%d, v%d' % (vPoll, vPoll))
        a('v_mul_f32 v%d, v%d, v%d' % (vScale, vScale, vPoll))

    build_a(0)
    scaled = False
    for i in range(32):
        n = 32 + i
        if i < 31:
            build_a(i + 1)
        tags = [t for t, _ in a.vm]
        if polled[0] and not scaled and tags.index('poll') < tags.index(('kv', n)):
            a.wait_vm('poll')
            scale_code()
            scaled = True
        a.wait_vm(('kv', n))
        a('v_mfma_f32_16x16x32_bf16 %s, %s, %s, %s' %
          (vr(vAcc), vr(vA + 4 * (i & 1)), vr(vRing + 4 * (n % R)), vr(vAcc) if i else '0'))
        refill(n)
    assert nwo[0] == 20
    if not scaled:
        a.wait_vm('poll')
        scale_code()
    stamp()

    for r in range(4):
        a('v_mul_f32 v%d, v%d, v%d' % (vAcc + r, vScale, vAcc + r))
    a('ds_write_b128 v%d, %s offset:%d' % (vOw, vr(vAcc), LDS_O))
    a('s_waitcnt vmcnt(0) lgkmcnt(0)')
    a.vm = []
    a('s_barrier')
    vO = vU
    a('ds_read_b128 %s, v%d offset:%d' % (vr(vO), vOr, LDS_O))
    a('s_waitcnt lgkmcnt(0)')
    for ctrl in ('quad_perm:[1,0,3,2]', 'quad_perm:[2,3,0,1]', 'row_half_mirror'):
        for t in range(4):
            dpp('v_add_f32', vO + t, vO + t, vO + t, ctrl)
    for t in range(4):
        a('v_cvt_pk_bf16_f32 v%d, v%d, v%d' % (vO + t, vO + t, vO + t))
    vA2, vD = vRing, vRing + 16

    def build2(t):
        for r in range(4):
            a('v_and_b32 v%d, v%d, v%d' % (vA2 + 4 * t + r, vO + t, vMask + r))

    def mf(t, u):
        a('v_mfma_f32_16x16x32_bf16 %s, %s, %s, %s' %
          (vr(vD + 4 * u), vr(vA2 + 4 * t), vr(vWb + 4 * (5 * t + u)), vr(vD + 4 * u) if t else '0'))

    def ywr(u):
        a('ds_write_b128 v%d, %s offset:%d' % (vYw, vr(vD + 4 * u), LDS_Y + 512 * u))

    build2(0)
    build2(1)
    for u in range(5):
        mf(0, u)
    build2(2)
    for u in range(5):
        mf(1, u)
    build2(3)
    for u in range(5):
        mf(2, u)
        mf(3, u)
    for u in range(5):
        ywr(u)
    a('s_waitcnt lgkmcnt(0)')
    a('s_barrier')
    a('s_cmp_ge_u32 s%d, 3' % sW)
    a('s_cbranch_scc1 L_not_pub')
    vP = vWb
    for w in range(8):
        a('ds_read_b128 %s, v%d offset:%d' % (vr(vP + 4 * w), vYr, LDS_Y + 2560 * w))
    a('v_cmp_gt_u32 vcc, 160, v0')
    a('s_and_b64 exec, exec, vcc')
    for step in (4, 2, 1):
        for w in range(step):
            if step == 4:
                a('s_waitcnt lgkmcnt(%d)' % (6 - 2 * w))
                x0, x1 = vP + 8 * w, vP + 8 * w + 4
            elif step == 2:
                x0, x1 = vP + 16 * w, vP + 16 * w + 8
            else:
                x0, x1 = vP, vP + 16
            for k in (0, 2):
                a('v_pk_add_f32 %s, %s, %s' % (vr(x0 + k, 2), vr(x0 + k, 2), vr(x1 + k, 2)))
    tg = [sT0, sT1, sT0, sT2]
    for k in range(4):
        a('v_bfi_b32 v%d, v%d, s%d, v%d' % (vP + k, vTag, tg[k], vP + k))
    a('buffer_store_dwordx4 %s, v%d, %s, 0 offen sc1' % (vr(vP), vYg, srd(WS)))
    if stamps:
        a('s_mov_b64 exec, -1')
        a('s_branch L_fin')
    else:
        a('s_endpgm')

    a.label('L_not_pub')
    a('s_cmp_lg_u32 s%d, 3' % sW)
    a('s_cbranch_scc1 L_not_cons')
    a('s_cmp_ge_u32 s2, 160')
    a('s_cbranch_scc1 L_fin')
    for n in range(1, 4):
        a('s_mov_b32 s%d, %d' % (4 + n, 81920 * n))
    a.label('L_cons_poll')
    for n in range(4):
        a('buffer_load_dwordx4 %s, v%d, %s, %s offen sc1' % (vr(vP + 4 * n), vCo, srd(WS), 's%d' % (4 + n) if n else '0'))
    for n in range(4):
        a('s_waitcnt vmcnt(%d)' % (3 - n))
        for k in range(4):
            a('v_xor_b32 v%d, s%d, v%d' % (vP + 4 * n + k, tg[k], vP + 4 * n + k))
        if n == 0:
            a('v_or3_b32 v%d, v%d, v%d, v%d' % (vT, vP, vP + 1, vP + 2))
            a('v_or_b32 v%d, v%d, v%d' % (vT, vT, vP + 3))
        else:
            a('v_or3_b32 v%d, v%d, v%d, v%d' % (vT, vT, vP + 4 * n, vP + 4 * n + 1))
            a('v_or3_b32 v%d, v%d, v%d, v%d' % (vT, vT, vP + 4 * n + 2, vP + 4 * n + 3))
            for k in (0, 2):
                a('v_pk_add_f32 %s, %s, %s' % (vr(vP + k, 2), vr(vP + k, 2), vr(vP + 4 * n + k, 2)))
    a.vm = []
    a('v_and_b32 v%d, v%d, v%d' % (vT, vTag, vT))
    a('v_cmp_ne_u32 vcc, 0, v%d' % vT)
    a('s_cbranch_vccnz L_cons_retry')
    a.label('L_cons_ok')
    dpp('v_add_f32', vT, vP, vP, 'row_ror:8', 0x3)
    dpp('v_add_f32', vT + 1, vP + 2, vP + 2, 'row_ror:8', 0x3)
    dpp('v_add_f32', vT, vP + 1, vP + 1, 'row_ror:8', 0xc)
    dpp('v_add_f32', vT + 1, vP + 3, vP + 3, 'row_ror:8', 0xc)
    dpp('v_add_f32', vP, vT, vT, 'row_shl:4', 0x5)
    dpp('v_add_f32', vP, vT + 1, vT + 1, 'row_shr:4', 0xa)
    dpp('v_add_f32', vP, vP, vP, 'quad_perm:[2,3,0,1]')
    rows_reduce('v_add_f32', vP, vT)
    a('v_cvt_pk_bf16_f32 v%d, v%d, v%d' % (vP, vP, vP))
    a('s_mov_b64 exec, 0x3333')
    a('buffer_store_short v%d, v%d, %s, 0 offen' % (vP, vCst, srd(OUT)))
    if stamps:
        a('s_mov_b64 exec, -1')
        a('s_branch L_fin')
    else:
        a('s_endpgm')
    a.label('L_cons_retry')
    a('s_sub_u32 s%d, s%d, 1' % (sSpin, sSpin))
    a('s_cbranch_scc1 L_cons_ok')
    if sleep:
        a('s_sleep %d' % sleep)
    a('s_branch L_cons_poll')

    a.label('L_ml_retry')
    a('s_sub_u32 s%d, s%d, 1' % (sSpin, sSpin))
    a('s_cbranch_scc1 L_ml_ok')
    a('buffer_load_dwordx4 %s, v%d, %s, 0 offen sc1' % (vr(vPoll), vMLl, srd(WS)))
    a('s_waitcnt vmcnt(0)')
    a('s_branch L_ml_check')

    a.label('L_not_cons')
    a('s_cmp_lg_u32 s%d, 4' % sW)
    a('s_cbranch_scc1 L_fin')
    a('s_cmp_lg_u32 s2, 0xff')
    a('s_cbranch_scc1 L_fin')
    a('v_lshlrev_b32 v%d, 7, v%d' % (vT + 1, vLane))
    for n in range(4):
        a('s_mov_b32 s%d, %d' % (4 + n, ML_OFF + 8192 * n))
    a.label('L_ep_poll')
    for n in range(4):
        a('buffer_load_dwordx2 %s, v%d, %s, s%d offen sc1' % (vr(vP + 2 * n, 2), vT + 1, srd(WS), 4 + n))
    a('s_waitcnt vmcnt(0)')
    for n in range(4):
        a('v_xor_b32 v%d, s%d, v%d' % (vP + 2 * n + 1, sT, vP + 2 * n + 1))
    a('v_or3_b32 v%d, v%d, v%d, v%d' % (vT, vP + 1, vP + 3, vP + 5))
    a('v_or_b32 v%d, v%d, v%d' % (vT, vT, vP + 7))
    a('v_cmp_ne_u32 vcc, 0, v%d' % vT)
    a('s_cbranch_vccz L_ep_ok')
    a('s_sub_u32 s%d, s%d, 1' % (sSpin, sSpin))
    a('s_cbranch_scc0 L_ep_poll')
    a.label('L_ep_ok')
    a('v_mov_b32 v%d, s%d' % (vT, sT))
    a('v_mov_b32 v%d, 0' % (vT + 1))
    a('s_mov_b64 exec, 1')
    a('buffer_store_dword v%d, v%d, %s, 0 offen sc1' % (vT, vT + 1, srd(WS)))
    a('s_mov_b64 exec, -1')
    a.label('L_fin')
    if stamps:
        stamp()
        a('s_waitcnt vmcnt(0)')
        stamp()
        a('s_getreg_b32 s%d, hwreg(HW_REG_XCC_ID)' % (sStamp + 14))
        a('s_getreg_b32 s%d, hwreg(HW_REG_HW_ID)' % (sStamp + 15))
        a('s_waitcnt lgkmcnt(0)')
        a('v_mov_b32 v%d, 0' % vT)
        for k in range(16):
            a('v_writelane_b32 v%d, s%d, %d' % (vT, sStamp + k, k))
        a('s_lshl_b32 s%d, s2, 3' % sTmp)
        a('s_add_u32 s%d, s%d, s%d' % (sTmp, sTmp, sW))
        a('s_lshl_b32 s%d, s%d, 6' % (sTmp, sTmp))
        a('s_add_u32 s%d, s%d, 0x%x' % (sTmp, sTmp, STAMP_OFF))
        a('v_lshlrev_b32 v%d, 2, v%d' % (vT + 1, vLane))
        a('s_mov_b64 exec, 0xffff')
        a('buffer_store_dword v%d, v%d, %s, s%d offen' % (vT, vT + 1, srd(WS), sTmp))
    a.label('L_end')
    a('s_endpgm')

    out = HEADER
    out += '; @launch grid=(256,1,1) block=(512,1,1) lds=32768\n'
    out += '.amdgcn_target "amdgcn-amd-amdhsa--gfx950"\n.text\n.globl %s_kernel\n.p2align 8\n' % NAME
    out += '.type %s_kernel,@function\n%s_kernel:\n' % (NAME, NAME)
    out += a.text()
    out += '''.section .rodata,"a"
.p2align 6
.amdhsa_kernel %s_kernel
  .amdhsa_next_free_vgpr 256
  .amdhsa_next_free_sgpr 96
  .amdhsa_accum_offset 256
  .amdhsa_group_segment_fixed_size 0
  .amdhsa_kernarg_size 64
  .amdhsa_user_sgpr_count 2
  .amdhsa_user_sgpr_kernarg_segment_ptr 1
  .amdhsa_system_sgpr_workgroup_id_x 1
  .amdhsa_float_denorm_mode_32 3
.end_amdhsa_kernel
''' % NAME
    return out


if __name__ == '__main__':
    kw = {}
    for arg in sys.argv[2:]:
        k, v = arg.split('=', 1)
        kw[k] = eval(v)
    text = gen(**kw)
    open(sys.argv[1], 'w').write(text)
```

```python
import sys
from asmlib import Asm

NAME = 'standalone__sliding_block_cached__decode'
HEADER = '''; Kernarg layout for this problem (64 bytes, ptrs only, base s[0:1]):
'''

ML_OFF = 4096
QX_OFF = 64 << 10
OX_OFF = 384 << 10
Y_OFF = 512 << 10
STAMP_OFF = 1 << 22
WS_BYTES = (1 << 22) + 256 * 8 * 64
LDS_Q, LDS_O = 0, 256
O_STRIDE = 544


def gen(F=4, Fend=6, end_at=52, NS=28, order='iiwwwisisi', wgmap='A', kvflag=' nt', wflag=' nt',
        n0=14, gather_at=7, catch=3, poll_at=52, wo_at=64, stamps=False, sleep=1, gflag=' sc1', yflag=' sc1'):
    a = Asm()
    sW, sH, sB, sS = 20, 21, 22, 23
    K, V, WQ, WO, X, WS, OUT = 24, 28, 32, 36, 40, 44, 48
    sOff, sT, sT0, sT1, sT2, sCS, sSelLo, sSelHi, sSpin = 52, 53, 54, 55, 56, 57, 58, 59, 60
    sTmp, sBH, sIdx, sKoff, sTmp2 = 61, 62, 63, 64, 65
    sStamp = 66
    srd = lambda n: 's[%d:%d]' % (n, n + 3)
    vr = lambda n, k=4: 'v[%d:%d]' % (n, n + k - 1)
    vLane, vKV, vWQ, vMask, vQ, vAcc, vU, vA, vX = 1, 2, 3, 4, 8, 12, 16, 24, 32
    vWO, vC, vG, vT = 42, 43, 44, 45
    vQs, vQg, vOw, vOr, vOs, vOg, vYg, vMLs, vMLl, vCo, vCst, vM, vScale, vTag, vQr = range(48, 63)
    vWb, vRing = 64, 144
    assert vRing + 4 * NS <= 256
    tg = [sT0, sT1, sT0, sT2]

    def stamp(k):
        if stamps:
            a('s_memrealtime s[%d:%d]' % (sStamp + 2 * k, sStamp + 2 * k + 1))

    pos = {'s': [], 'w': [], 'i': []}
    for p, ch in enumerate(order):
        pos[ch].append(p + 10)
    spread = lambda val, ps: sum(((val >> k) & 1) << p for k, p in enumerate(ps))
    cur_off = [None]

    def soff(v):
        if v == 0:
            return '0'
        if cur_off[0] != v:
            a('s_mov_b32 s%d, 0x%x' % (sOff, v))
            cur_off[0] = v
        return 's%d' % sOff

    def kv_load(n):
        off = spread(n % 32, pos['i'])
        s = soff(off - off % 4096)
        a('buffer_load_dwordx4 %s, v%d, %s, %s offen offset:%d%s' %
          (vr(vRing + 4 * (n % NS)), vKV, srd(K if n < 32 else V), s, off % 4096, kvflag), tag=('kv', n))

    def dpp(op, d, s0, s1, ctrl, bank=0xf):
        a('%s_dpp v%d, v%d, v%d %s row_mask:0xf bank_mask:0x%x' % (op, d, s0, s1, ctrl, bank))

    def swap_reduce(op, regs, tmps, which):
        for v, t in zip(regs, tmps):
            a('v_mov_b32 v%d, v%d' % (t, v))
        for v, t in zip(regs, tmps):
            a('v_permlane%d_swap_b32 v%d, v%d' % (which, v, t))
        for v, t in zip(regs, tmps):
            a('%s v%d, v%d, v%d' % (op, v, v, t))

    def untag(base, n, acc):
        for j in range(n):
            for k in range(4):
                a('v_xor_b32 v%d, s%d, v%d' % (base + 4 * j + k, tg[k], base + 4 * j + k))
            if j == 0:
                a('v_or3_b32 v%d, v%d, v%d, v%d' % (acc, base, base + 1, base + 2))
                a('v_or_b32 v%d, v%d, v%d' % (acc, acc, base + 3))
            else:
                a('v_or3_b32 v%d, v%d, v%d, v%d' % (acc, acc, base + 4 * j, base + 4 * j + 1))
                a('v_or3_b32 v%d, v%d, v%d, v%d' % (acc, acc, base + 4 * j + 2, base + 4 * j + 3))
        a('v_and_b32 v%d, v%d, v%d' % (acc, vTag, acc))
        a('v_cmp_ne_u32 vcc, 0, v%d' % acc)

    def spread_s(dst, src, ps, tmp):
        first = True
        for k, p in enumerate(ps):
            a('s_bfe_u32 s%d, s%d, 0x%x' % (tmp, src, 0x10000 | k))
            a('s_lshl_b32 s%d, s%d, %d' % (tmp, tmp, p))
            a('s_add_u32 s%d, s%d, s%d' % (dst, dst, tmp))

    a('s_cmp_ge_u32 s2, 0x100')
    a('s_cbranch_scc1 L_end')
    a('s_load_dwordx16 s[4:19], s[0:1], 0')
    stamp(0)
    a('v_lshrrev_b32 v%d, 6, v0' % vT)
    a('v_and_b32 v%d, 63, v0' % vLane)
    a('v_readfirstlane_b32 s%d, v%d' % (sW, vT))
    if wgmap == 'A':
        a('s_and_b32 s%d, s2, 31' % sH)
        a('s_bfe_u32 s%d, s2, 0x10005' % sB)
        a('s_lshr_b32 s%d, s2, 6' % sS)
    elif wgmap == 'C':
        a('s_and_b32 s%d, s2, 7' % sH)
        a('s_bfe_u32 s%d, s2, 0x20003' % sTmp)
        a('s_lshl2_add_u32 s%d, s%d, s%d' % (sH, sH, sTmp))
        a('s_lshr_b32 s%d, s2, 7' % sB)
        a('s_bfe_u32 s%d, s2, 0x20005' % sS)
    elif wgmap == 'D':
        a('s_and_b32 s%d, s2, 7' % sH)
        a('s_lshr_b32 s%d, s2, 6' % sTmp)
        a('s_lshl3_add_u32 s%d, s%d, s%d' % (sH, sTmp, sH))
        a('s_bfe_u32 s%d, s2, 0x10005' % sB)
        a('s_bfe_u32 s%d, s2, 0x20003' % sS)
    a('s_lshl_b32 s%d, s%d, 5' % (sBH, sB))
    a('s_add_u32 s%d, s%d, s%d' % (sBH, sBH, sH))
    a('s_lshl2_add_u32 s%d, s%d, s%d' % (sIdx, sB, sS))
    a('s_lshl_b32 s%d, s%d, 22' % (sKoff, sBH))
    a('s_add_u32 s%d, s%d, 0x300000' % (sKoff, sKoff))
    a('s_mov_b32 s%d, 0' % sTmp)
    spread_s(sTmp, sS, pos['s'], sTmp2)
    spread_s(sTmp, sW, pos['w'], sTmp2)
    a('v_lshl_add_u32 v%d, v%d, 4, s%d' % (vKV, vLane, sTmp))
    a('v_and_b32 v%d, 15, v0' % vC)
    a('v_bfe_u32 v%d, v0, 4, 2' % vG)
    a('s_mov_b32 s%d, 0x100000' % (K + 2))
    a('s_mov_b32 s%d, 0x20000' % (K + 3))
    a('s_cmp_eq_u32 s%d, 0' % sW)
    a('s_cbranch_scc1 L_agent')
    a('s_waitcnt lgkmcnt(0)')
    a('s_add_u32 s%d, s6, s%d' % (K, sKoff))
    a('s_addc_u32 s%d, s7, 0' % (K + 1))
    a('s_load_dword s%d, s[18:19], 0' % sT)
    for n in range(F):
        kv_load(n)
    stamp(1)
    a('s_branch L_setup')

    a.label('L_agent')
    a.vm = []
    cur_off[0] = None
    a('v_mul_u32_u24 v%d, 0x%x, v%d' % (vWQ, 20 * 8192, vG))
    a('v_lshl_add_u32 v%d, v%d, 4, v%d' % (vWQ, vC, vWQ))
    a('v_lshrrev_b32 v%d, 3, v%d' % (vT, vC))
    a('v_mul_u32_u24 v%d, 1280, v%d' % (vT, vT))
    a('v_mad_u32_u24 v%d, v%d, 40, v%d' % (vT, vG, vT))
    a('s_mul_i32 s%d, s%d, 160' % (sTmp, sIdx))
    a('v_add_u32 v%d, s%d, v%d' % (vT, sTmp, vT))
    a('s_mul_i32 s%d, s%d, 0x%x' % (sTmp, sIdx, 80 * 8192))
    a('s_lshl_b32 s%d, s%d, 8' % (sTmp2, sH))
    a('s_add_u32 s%d, s%d, s%d' % (sTmp, sTmp, sTmp2))
    a('s_mov_b32 s%d, 0x%x' % (WQ + 2, 79 * 8192 + 256))
    a('s_mov_b32 s%d, 0x20000' % (WQ + 3))
    a('s_mov_b32 s%d, 2560' % (X + 2))
    a('s_mov_b32 s%d, 0x20000' % (X + 3))
    a('s_waitcnt lgkmcnt(0)')
    a('s_add_u32 s%d, s10, s%d' % (WQ, sTmp))
    a('s_addc_u32 s%d, s11, 0' % (WQ + 1))
    a('s_mov_b32 s%d, s4' % X)
    a('s_mov_b32 s%d, s5' % (X + 1))
    a('s_add_u32 s%d, s6, s%d' % (K, sKoff))
    a('s_addc_u32 s%d, s7, 0' % (K + 1))
    a('s_load_dword s%d, s[18:19], 0' % sT)
    a('buffer_load_dwordx4 %s, v%d, %s, 0 offen' % (vr(vX), vT, srd(X)), tag='x0')
    a('buffer_load_dwordx4 %s, v%d, %s, 0 offen offset:16' % (vr(vX + 4), vT, srd(X)), tag='x1')
    a('buffer_load_dwordx2 %s, v%d, %s, 0 offen offset:32' % (vr(vX + 8, 2), vT, srd(X)), tag='x2')
    for t in range(20):
        s = soff(t * 8192)
        a('buffer_load_dwordx4 %s, v%d, %s, %s offen%s' % (vr(vWb + 4 * t), vWQ, srd(WQ), s, wflag), tag=('wq', t))
    for n in range(F):
        kv_load(n)
    stamp(1)
    agent_vm = list(a.vm)

    a.label('L_setup')
    cur_off[0] = None
    a('s_add_u32 s%d, s8, s%d' % (V, sKoff))
    a('s_addc_u32 s%d, s9, 0' % (V + 1))
    a('s_lshl3_add_u32 s%d, s%d, s%d' % (sKoff, sH, sIdx))
    a('s_mul_i32 s%d, s%d, %d' % (sTmp, sKoff, 16 * 1280))
    a('s_add_u32 s%d, s12, s%d' % (WO, sTmp))
    a('s_addc_u32 s%d, s13, 0' % (WO + 1))
    a('s_mov_b32 s%d, s18' % WS)
    a('s_mov_b32 s%d, s19' % (WS + 1))
    a('s_mov_b32 s%d, s14' % OUT)
    a('s_mov_b32 s%d, s15' % (OUT + 1))
    for r_, sz in ((V, 0x100000), (WO, 16 * 1280), (WS, WS_BYTES), (OUT, 2560)):
        a('s_mov_b32 s%d, 0x%x' % (r_ + 2, sz))
        a('s_mov_b32 s%d, 0x20000' % (r_ + 3))
    a('s_mov_b32 s%d, 0x3e0293ee' % sCS)
    a('s_mov_b32 s%d, 0x01000100' % sSelLo)
    a('s_mov_b32 s%d, 0x03020302' % sSelHi)
    a('s_mov_b32 s%d, 0x10000' % sSpin)
    a('v_and_b32 v%d, 1, v0' % vT)
    a('v_lshlrev_b32 v%d, 4, v%d' % (vT, vT))
    a('v_mov_b32 v%d, 0xffff' % (vT + 1))
    a('v_lshlrev_b32 v%d, v%d, v%d' % (vT, vT, vT + 1))
    a('v_bfe_u32 v%d, v0, 1, 2' % (vT + 1))
    for r in range(4):
        a('v_cmp_eq_u32 vcc, %d, v%d' % (r, vT + 1))
        a('v_cndmask_b32 v%d, 0, v%d, vcc' % (vMask + r, vT))
    a('v_mov_b32 v%d, 0x3ff' % vTag)
    a('v_lshlrev_b32 v%d, 4, v%d' % (vQr, vC))
    a('v_and_b32 v%d, 31, v0' % vT)
    a('v_lshlrev_b32 v%d, 4, v%d' % (vT, vT))
    a('s_lshl_b32 s%d, s%d, 9' % (sTmp, sBH))
    a('s_add_u32 s%d, s%d, %d' % (sTmp, sTmp, ML_OFF))
    a('v_add_u32 v%d, s%d, v%d' % (vMLl, sTmp, vT))
    a('s_lshl3_add_u32 s%d, s%d, s%d' % (sTmp2, sS, sW))
    a('s_lshl4_add_u32 s%d, s%d, s%d' % (sTmp, sTmp2, sTmp))
    a('v_mov_b32 v%d, s%d' % (vMLs, sTmp))
    a('v_lshrrev_b32 v%d, 5, v%d' % (vT + 1, vLane))
    a('v_lshl_add_u32 v%d, v%d, 12, v%d' % (vT, vT + 1, vT))
    a('s_lshl4_add_u32 s%d, s%d, s%d' % (sTmp, sH, sIdx))
    a('s_lshl_b32 s%d, s%d, 9' % (sTmp, sTmp))
    a('s_add_u32 s%d, s%d, %d' % (sTmp, sTmp, QX_OFF))
    a('v_add_u32 v%d, s%d, v%d' % (vQs, sTmp, vT))
    a('s_lshl1_add_u32 s%d, s%d, s%d' % (sTmp, sH, sB))
    a('s_lshl_b32 s%d, s%d, 12' % (sTmp, sTmp))
    a('s_add_u32 s%d, s%d, %d' % (sTmp, sTmp, QX_OFF))
    a('v_lshl_add_u32 v%d, v%d, 4, s%d' % (vQg, vLane, sTmp))
    a('v_and_b32 v%d, 1, v%d' % (vT, vG))
    a('v_lshlrev_b32 v%d, 4, v%d' % (vT, vT))
    a('v_lshl_add_u32 v%d, v%d, 5, v%d' % (vT, vC, vT))
    a('s_mul_i32 s%d, s%d, %d' % (sTmp, sW, O_STRIDE))
    a('v_add_u32 v%d, s%d, v%d' % (vOw, sTmp, vT))
    a('v_and_b32 v%d, 7, v0' % vT)
    a('v_mul_u32_u24 v%d, %d, v%d' % (vT, O_STRIDE, vT))
    a('v_lshl_add_u32 v%d, v%d, 4, v%d' % (vT, vG, vT))
    a('s_lshl_b32 s%d, s%d, 6' % (sTmp, sW))
    a('v_add_u32 v%d, s%d, v%d' % (vOr, sTmp, vT))
    a('s_lshl3_add_u32 s%d, s%d, s%d' % (sTmp, sH, sW))
    a('s_lshl3_add_u32 s%d, s%d, s%d' % (sTmp, sTmp, sIdx))
    a('s_lshl_b32 s%d, s%d, 6' % (sTmp, sTmp))
    a('s_add_u32 s%d, s%d, %d' % (sTmp, sTmp, OX_OFF))
    a('v_lshl_add_u32 v%d, v%d, 4, s%d' % (vOs, vG, sTmp))
    a('v_lshrrev_b32 v%d, 3, v%d' % (vT, vC))
    a('v_and_b32 v%d, 3, v0' % (vT + 1))
    a('v_lshl_add_u32 v%d, v%d, 2, v%d' % (vT, vT, vT + 1))
    a('v_lshl_add_u32 v%d, v%d, 2, v%d' % (vT, vT, vG))
    a('s_lshl_b32 s%d, s%d, 9' % (sTmp, sKoff))
    a('s_add_u32 s%d, s%d, %d' % (sTmp, sTmp, OX_OFF))
    a('v_lshl_add_u32 v%d, v%d, 4, s%d' % (vOg, vT, sTmp))
    a('s_mul_i32 s%d, s%d, 5120' % (sTmp, sKoff))
    a('s_add_u32 s%d, s%d, %d' % (sTmp, sTmp, Y_OFF))
    a('v_lshl_add_u32 v%d, v0, 4, s%d' % (vYg, sTmp))
    a('v_mul_u32_u24 v%d, 5120, v%d' % (vWO, vG))
    a('v_lshl_add_u32 v%d, v%d, 4, v%d' % (vWO, vC, vWO))
    a('s_lshl_b32 s%d, s%d, 8' % (sTmp, sW))
    a('s_cmp_ge_u32 s%d, 5' % sW)
    a('s_cselect_b32 s%d, 0x100000, s%d' % (sTmp, sTmp))
    a('v_add_u32 v%d, s%d, v%d' % (vWO, sTmp, vWO))
    a('s_and_b32 s%d, s2, 7' % sTmp)
    a('s_mul_i32 s%d, s%d, 20' % (sTmp, sTmp))
    a('s_lshr_b32 s%d, s2, 3' % sTmp2)
    a('s_add_u32 s%d, s%d, s%d' % (sTmp, sTmp, sTmp2))
    a('s_lshl1_add_u32 s%d, s%d, s%d' % (sTmp, sTmp, sW))
    a('s_sub_u32 s%d, s%d, 5' % (sTmp, sTmp))
    a('s_lshl_b32 s%d, s%d, 4' % (sTmp2, sTmp))
    a('s_add_u32 s%d, s%d, %d' % (sTmp2, sTmp2, Y_OFF))
    a('v_mul_u32_u24 v%d, 5120, v%d' % (vCo, vLane))
    a('v_add_u32 v%d, s%d, v%d' % (vCo, sTmp2, vCo))
    a('s_lshr_b32 s4, s%d, 6' % sTmp)
    a('s_lshl_b32 s4, s4, 7')
    a('s_and_b32 s5, s%d, 15' % sTmp)
    a('s_lshl3_add_u32 s4, s5, s4')
    a('s_bfe_u32 s5, s%d, 0x10004' % sTmp)
    a('s_lshl2_add_u32 s4, s5, s4')
    a('s_bfe_u32 s5, s%d, 0x10005' % sTmp)
    a('s_mul_i32 s5, s5, 640')
    a('s_add_u32 s4, s4, s5')
    a('v_bfe_u32 v%d, v0, 2, 1' % vT)
    a('v_bfe_u32 v%d, v0, 3, 1' % (vT + 1))
    a('v_lshl_add_u32 v%d, v%d, 1, v%d' % (vT, vT, vT + 1))
    a('v_add_lshl_u32 v%d, s4, v%d, 1' % (vCst, vT))
    a('s_waitcnt lgkmcnt(0)')
    a('s_mul_i32 s%d, s%d, 0x9e3779b1' % (sT, sT))
    a('s_add_u32 s%d, s%d, 0x7f4a7c15' % (sT, sT))
    a('s_and_b32 s%d, s%d, 0x3ff' % (sT0, sT))
    a('s_bfe_u32 s%d, s%d, 0xa000a' % (sT1, sT))
    a('s_bfe_u32 s%d, s%d, 0xa0014' % (sT2, sT))
    a('s_cmp_eq_u32 s%d, 0' % sW)
    a('s_cbranch_scc1 L_agent2')
    a.vm = [(('kv', n), True) for n in range(F)]
    for n in range(F, n0):
        a.wait_vm(('kv', n - F))
        kv_load(n)
    a('s_branch L_qbar')

    a.label('L_agent2')
    a.vm = agent_vm
    cur_off[0] = None
    a.wait_vm('x2')

    def xdup(t):
        a('v_perm_b32 v%d, v%d, v%d, s%d' % (vT + (t & 1), vX + t // 2, vX + t // 2, sSelHi if t & 1 else sSelLo))

    xdup(0)
    for t in range(20):
        for r in range(4):
            a('v_and_b32 v%d, v%d, v%d' % (vA + r, vT + (t & 1), vMask + r))
        if t < 19:
            xdup(t + 1)
        a.wait_vm(('wq', t))
        a('v_mfma_f32_16x16x32_bf16 %s, %s, %s, %s' % (vr(vAcc), vr(vA), vr(vWb + 4 * t), vr(vAcc) if t else '0'))
    for k in range(4):
        a('v_bfi_b32 v%d, v%d, s%d, v%d' % (vAcc + k, vTag, tg[k], vAcc + k))
    a('buffer_store_dwordx4 %s, v%d, %s, 0 offen%s' % (vr(vAcc), vQs, srd(WS), gflag), tag='qst')

    def qgather():
        for j in range(4):
            a('buffer_load_dwordx4 %s, v%d, %s, 0 offen offset:%d sc1' % (vr(vWb + 4 * j), vQg, srd(WS), 1024 * j),
              tag=('qg', j))

    for n in range(F, n0):
        a.wait_vm(('kv', n - F))
        if n == gather_at:
            qgather()
        kv_load(n)
    assert gather_at <= n0 - F
    a.wait_vm(('qg', 3))
    a.label('L_q_check')
    untag(vWb, 4, vT)
    a('s_cbranch_vccnz L_q_retry')
    a.label('L_q_ok')
    for j in range(1, 4):
        for k in (0, 2):
            a('v_pk_add_f32 %s, %s, %s' % (vr(vWb + k, 2), vr(vWb + k, 2), vr(vWb + 4 * j + k, 2)))
    swap_reduce('v_add_f32', range(vWb, vWb + 4), range(vWb + 4, vWb + 8), 32)
    a('v_cvt_pk_bf16_f32 v%d, v%d, v%d' % (vWb, vWb, vWb + 1))
    a('v_cvt_pk_bf16_f32 v%d, v%d, v%d' % (vWb + 1, vWb + 2, vWb + 3))
    a('v_and_b32 v%d, 1, v%d' % (vT, vG))
    a('v_lshl_add_u32 v%d, v%d, 3, v%d' % (vT, vT, vQr))
    a('ds_write_b64 v%d, %s offset:%d' % (vT, vr(vWb, 2), LDS_Q))
    a('s_waitcnt lgkmcnt(0)')

    a.label('L_qbar')
    a.vm = [(('kv', n), True) for n in range(n0 - F, n0)]
    cur_off[0] = None
    a('s_barrier')
    a('ds_read_b128 %s, v%d offset:%d' % (vr(vQ), vQr, LDS_Q))
    a('s_waitcnt lgkmcnt(0)')
    stamp(2)

    vPoll = vX + 4
    vS, vTT = vX, vX + 8
    pend = []
    bank_of = [0, 2, 1, 3]
    state = {'polled': False, 'scaled': False, 'wo': False}

    def score(n):
        rb = vRing + 4 * (n % NS)
        s = vS + (n & 7)
        for k in range(4):
            a('v_dot2_f32_bf16 v%d, v%d, v%d, %s' % (s, rb + k, vQ + k, 'v%d' % s if k else '0'))
            if pend and k in (0, 2):
                pend.pop(0)()
        if n % 4 == 3:
            assert not pend
            s0 = vS + (n & 4)
            u = vU + n // 4
            pend.extend([
                lambda: dpp('v_add_f32', vTT, s0, s0, 'row_ror:8', 0x3),
                lambda: dpp('v_add_f32', vTT, s0 + 1, s0 + 1, 'row_ror:8', 0xc),
                lambda: dpp('v_add_f32', vTT + 1, s0 + 2, s0 + 2, 'row_ror:8', 0x3),
                lambda: dpp('v_add_f32', vTT + 1, s0 + 3, s0 + 3, 'row_ror:8', 0xc),
                lambda: dpp('v_add_f32', u, vTT, vTT, 'row_shl:4', 0x5),
                lambda: dpp('v_add_f32', u, vTT + 1, vTT + 1, 'row_shr:4', 0xa),
                lambda: dpp('v_add_f32', u, u, u, 'quad_perm:[1,0,3,2]'),
                lambda: dpp('v_add_f32', u, u, u, 'quad_perm:[2,3,0,1]'),
            ])

    def softmax():
        while pend:
            pend.pop(0)()
        stamp(3)
        a('v_max3_f32 v%d, v%d, v%d, v%d' % (vM, vU, vU + 1, vU + 2))
        a('v_max3_f32 v%d, v%d, v%d, v%d' % (vM, vM, vU + 3, vU + 4))
        a('v_max3_f32 v%d, v%d, v%d, v%d' % (vM, vM, vU + 5, vU + 6))
        a('v_max_f32 v%d, v%d, v%d' % (vM, vM, vU + 7))
        dpp('v_max_f32', vM, vM, vM, 'row_ror:4')
        dpp('v_max_f32', vM, vM, vM, 'row_ror:8')
        swap_reduce('v_max_f32', [vM], [vT], 16)
        swap_reduce('v_max_f32', [vM], [vT], 32)
        a('v_mul_f32 v%d, s%d, v%d' % (vM, sCS, vM))
        for k in range(8):
            a('v_fma_f32 v%d, v%d, s%d, -v%d' % (vU + k, vU + k, sCS, vM))
        for k in range(8):
            a('v_exp_f32 v%d, v%d' % (vU + k, vU + k))
        vML = vX
        a('v_add_f32 v%d, v%d, v%d' % (vML + 2, vU, vU + 1))
        for k in range(2, 8):
            a('v_add_f32 v%d, v%d, v%d' % (vML + 2, vML + 2, vU + k))
        for k in range(8):
            a('v_cvt_pk_bf16_f32 v%d, v%d, v%d' % (vU + k, vU + k, vU + k))
        dpp('v_add_f32', vML + 2, vML + 2, vML + 2, 'row_ror:4')
        a('v_mov_b32 v%d, v%d' % (vML, vM))
        a('v_mov_b32 v%d, s%d' % (vML + 1, sT))
        dpp('v_add_f32', vML + 2, vML + 2, vML + 2, 'row_ror:8')
        a('v_mov_b32 v%d, s%d' % (vML + 3, sT))
        swap_reduce('v_add_f32', [vML + 2], [vT], 16)
        swap_reduce('v_add_f32', [vML + 2], [vT], 32)
        a('s_mov_b64 exec, 1')
        a('buffer_store_dwordx4 %s, v%d, %s, 0 offen sc1' % (vr(vML), vMLs, srd(WS)), tag='mlst')
        a('s_mov_b64 exec, -1')
        build_a(0)

    def build_a(i):
        for r in range(4):
            a('v_and_b32_dpp v%d, v%d, v%d row_newbcast:%d row_mask:0xf bank_mask:0xf' %
              (vA + 4 * (i & 1) + r, vU + i // 4, vMask + r, 4 * bank_of[i % 4]))

    def scale_code():
        a.comment('combine the 32 wave statistics of this (batch, head)')
        a.label('L_ml_check')
        a('v_xor_b32 v%d, s%d, v%d' % (vT, sT, vPoll + 1))
        a('v_xor_b32 v%d, s%d, v%d' % (vT + 1, sT, vPoll + 3))
        a('v_or_b32 v%d, v%d, v%d' % (vT, vT, vT + 1))
        a('v_cmp_ne_u32 vcc, 0, v%d' % vT)
        a('s_cbranch_vccnz L_ml_retry')
        a.label('L_ml_ok')
        vMM = vT + 1
        dpp('v_max_f32', vMM, vPoll, vPoll, 'quad_perm:[1,0,3,2]')
        dpp('v_max_f32', vMM, vMM, vMM, 'quad_perm:[2,3,0,1]')
        dpp('v_max_f32', vMM, vMM, vMM, 'row_ror:4')
        dpp('v_max_f32', vMM, vMM, vMM, 'row_ror:8')
        swap_reduce('v_max_f32', [vMM], [vT], 16)
        a('v_sub_f32 v%d, v%d, v%d' % (vPoll, vPoll, vMM))
        a('v_sub_f32 v%d, v%d, v%d' % (vScale, vM, vMM))
        a('v_exp_f32 v%d, v%d' % (vPoll, vPoll))
        a('v_exp_f32 v%d, v%d' % (vScale, vScale))
        a('v_mul_f32 v%d, v%d, v%d' % (vPoll, vPoll, vPoll + 2))
        dpp('v_add_f32', vPoll, vPoll, vPoll, 'quad_perm:[1,0,3,2]')
        dpp('v_add_f32', vPoll, vPoll, vPoll, 'quad_perm:[2,3,0,1]')
        dpp('v_add_f32', vPoll, vPoll, vPoll, 'row_ror:4')
        dpp('v_add_f32', vPoll, vPoll, vPoll, 'row_ror:8')
        swap_reduce('v_add_f32', [vPoll], [vT], 16)
        a('v_rcp_f32 v%d, v%d' % (vPoll, vPoll))
        a('v_mul_f32 v%d, v%d, v%d' % (vScale, vScale, vPoll))
        state['scaled'] = True

    def process(n):
        if n < 32:
            score(n)
            if n == 31:
                softmax()
            return
        i = n - 32
        if state['polled'] and not state['scaled'] and 'poll' not in [t for t, _ in a.vm]:
            scale_code()
        a('v_mfma_f32_16x16x32_bf16 %s, %s, %s, %s' %
          (vr(vAcc), vr(vA + 4 * (i & 1)), vr(vRing + 4 * (n % NS)), vr(vAcc) if i else '0'))
        if i < 31:
            build_a(i + 1)

    def wo_loads():
        for t in range(4):
            a('buffer_load_dwordx4 %s, v%d, %s, 0 offen offset:%d%s' %
              (vr(vWb + 4 * t), vWO, srd(WO), 1280 * t, wflag), tag=('wo', t))
        state['wo'] = True

    issued, done, landed = n0, 0, n0 - F
    while done < 64:
        if landed < 64:
            a.wait_vm(('kv', landed))
            landed += 1
        while issued < 64 and issued - landed < (Fend if issued >= end_at else F) and issued - done < NS:
            if issued == poll_at:
                assert done > 32
                a('buffer_load_dwordx4 %s, v%d, %s, 0 offen sc1' % (vr(vPoll), vMLl, srd(WS)), tag='poll')
                state['polled'] = True
            if issued == wo_at:
                wo_loads()
            kv_load(issued)
            issued += 1
            if issued == 64 and not state['wo']:
                wo_loads()
        for _ in range(catch):
            if done < landed:
                process(done)
                done += 1
    assert state['scaled']
    stamp(4)

    for r in range(4):
        a('v_mul_f32 v%d, v%d, v%d' % (vAcc + r, vScale, vAcc + r))
    a('ds_write_b128 v%d, %s offset:%d' % (vOw, vr(vAcc), LDS_O))
    a('s_mov_b32 s4, 0x00010001')
    a('s_mov_b32 s5, 0x00010001')
    a('s_waitcnt lgkmcnt(0)')
    a('s_barrier')
    vO = vU
    a('ds_read_b128 %s, v%d offset:%d' % (vr(vO), vOr, LDS_O))
    a('s_waitcnt lgkmcnt(0)')
    for ctrl in ('quad_perm:[1,0,3,2]', 'quad_perm:[2,3,0,1]', 'row_half_mirror'):
        for t in range(4):
            dpp('v_add_f32', vO + t, vO + t, vO + t, ctrl)
    for k in range(4):
        a('v_bfi_b32 v%d, v%d, s%d, v%d' % (vO + k, vTag, tg[k], vO + k))
    a('s_mov_b64 exec, s[4:5]')
    a('buffer_store_dwordx4 %s, v%d, %s, 0 offen%s' % (vr(vO), vOs, srd(WS), gflag))
    a('s_mov_b64 exec, -1')
    a('s_cmp_ge_u32 s%d, 5' % sW)
    a('s_cbranch_scc1 L_not_proj')
    vP = vRing
    a.label('L_o_poll')
    a('buffer_load_dwordx4 %s, v%d, %s, 0 offen sc1' % (vr(vP), vOg, srd(WS)))
    a('s_waitcnt vmcnt(0)')
    a.vm = []
    untag(vP, 1, vT)
    a('s_cbranch_vccnz L_o_retry')
    a.label('L_o_ok')
    for ctrl in ('quad_perm:[1,0,3,2]', 'quad_perm:[2,3,0,1]'):
        for t in range(4):
            dpp('v_add_f32', vP + t, vP + t, vP + t, ctrl)
    for t in range(4):
        a('v_cvt_pk_bf16_f32 v%d, v%d, v%d' % (vP + t, vP + t, vP + t))
    vA2 = vRing + 4
    for t in range(4):
        for r in range(4):
            a('v_and_b32 v%d, v%d, v%d' % (vA2 + 4 * t + r, vP + t, vMask + r))
        if t:
            a('v_mfma_f32_16x16x32_bf16 %s, %s, %s, %s' %
              (vr(vAcc), vr(vA2 + 4 * t - 4), vr(vWb + 4 * t - 4), vr(vAcc) if t > 1 else '0'))
    a('v_mfma_f32_16x16x32_bf16 %s, %s, %s, %s' % (vr(vAcc), vr(vA2 + 12), vr(vWb + 12), vr(vAcc)))
    for k in range(4):
        a('v_bfi_b32 v%d, v%d, s%d, v%d' % (vAcc + k, vTag, tg[k], vAcc + k))
    a('buffer_store_dwordx4 %s, v%d, %s, 0 offen%s' % (vr(vAcc), vYg, srd(WS), yflag))
    if stamps:
        a('s_branch L_fin')
    else:
        a('s_endpgm')
    a.label('L_o_retry')
    a('s_sub_u32 s%d, s%d, 1' % (sSpin, sSpin))
    a('s_cbranch_scc0 L_o_poll')
    a('s_nop 1')
    a('s_branch L_o_ok')

    a.label('L_not_proj')
    a('s_cmp_eq_u32 s%d, 7' % sW)
    a('s_cbranch_scc1 L_not_cons')
    a('s_cmp_ge_u32 s2, 160')
    a('s_cbranch_scc1 L_fin')
    for n in range(1, 4):
        a('s_mov_b32 s%d, %d' % (4 + n, 64 * 5120 * n))
    a.label('L_cons_poll')
    for n in range(4):
        a('buffer_load_dwordx4 %s, v%d, %s, %s offen sc1' % (vr(vP + 4 * n), vCo, srd(WS), 's%d' % (4 + n) if n else '0'))
    for n in range(4):
        a('s_waitcnt vmcnt(%d)' % (3 - n))
        for k in range(4):
            a('v_xor_b32 v%d, s%d, v%d' % (vP + 4 * n + k, tg[k], vP + 4 * n + k))
        if n == 0:
            a('v_or3_b32 v%d, v%d, v%d, v%d' % (vT, vP, vP + 1, vP + 2))
            a('v_or_b32 v%d, v%d, v%d' % (vT, vT, vP + 3))
        else:
            a('v_or3_b32 v%d, v%d, v%d, v%d' % (vT, vT, vP + 4 * n, vP + 4 * n + 1))
            a('v_or3_b32 v%d, v%d, v%d, v%d' % (vT, vT, vP + 4 * n + 2, vP + 4 * n + 3))
            for k in (0, 2):
                a('v_pk_add_f32 %s, %s, %s' % (vr(vP + k, 2), vr(vP + k, 2), vr(vP + 4 * n + k, 2)))
    a.vm = []
    a('v_and_b32 v%d, v%d, v%d' % (vT, vTag, vT))
    a('v_cmp_ne_u32 vcc, 0, v%d' % vT)
    a('s_cbranch_vccnz L_cons_retry')
    a.label('L_cons_ok')
    dpp('v_add_f32', vT, vP, vP, 'row_ror:8', 0x3)
    dpp('v_add_f32', vT + 1, vP + 2, vP + 2, 'row_ror:8', 0x3)
    dpp('v_add_f32', vT, vP + 1, vP + 1, 'row_ror:8', 0xc)
    dpp('v_add_f32', vT + 1, vP + 3, vP + 3, 'row_ror:8', 0xc)
    dpp('v_add_f32', vP, vT, vT, 'row_shl:4', 0x5)
    dpp('v_add_f32', vP, vT + 1, vT + 1, 'row_shr:4', 0xa)
    dpp('v_add_f32', vP, vP, vP, 'quad_perm:[1,0,3,2]')
    dpp('v_add_f32', vP, vP, vP, 'quad_perm:[2,3,0,1]')
    swap_reduce('v_add_f32', [vP], [vT], 16)
    swap_reduce('v_add_f32', [vP], [vT], 32)
    a('v_cvt_pk_bf16_f32 v%d, v%d, v%d' % (vP, vP, vP))
    a('s_mov_b64 exec, 0x1111')
    a('buffer_store_short v%d, v%d, %s, 0 offen' % (vP, vCst, srd(OUT)))
    if stamps:
        a('s_mov_b64 exec, -1')
        a('s_branch L_fin')
    else:
        a('s_endpgm')
    a.label('L_cons_retry')
    a('s_sub_u32 s%d, s%d, 1' % (sSpin, sSpin))
    a('s_cbranch_scc1 L_cons_ok')
    if sleep:
        a('s_sleep %d' % sleep)
    a('s_branch L_cons_poll')

    a.label('L_ml_retry')
    a('s_sub_u32 s%d, s%d, 1' % (sSpin, sSpin))
    a('s_cbranch_scc1 L_ml_ok')
    a('buffer_load_dwordx4 %s, v%d, %s, 0 offen sc1' % (vr(vPoll), vMLl, srd(WS)))
    a('s_waitcnt vmcnt(0)')
    a('s_branch L_ml_check')

    a.label('L_q_retry')
    a('s_sub_u32 s%d, s%d, 1' % (sSpin, sSpin))
    a('s_cbranch_scc1 L_q_ok')
    qgather()
    a('s_waitcnt vmcnt(0)')
    a('s_branch L_q_check')

    a.label('L_not_cons')
    a('s_cmp_lg_u32 s2, 0xff')
    a('s_cbranch_scc1 L_fin')
    a('v_lshlrev_b32 v%d, 7, v%d' % (vT + 1, vLane))
    for n in range(4):
        a('s_mov_b32 s%d, %d' % (4 + n, ML_OFF + 8192 * n))
    a.label('L_ep_poll')
    for n in range(4):
        a('buffer_load_dwordx2 %s, v%d, %s, s%d offen sc1' % (vr(vP + 2 * n, 2), vT + 1, srd(WS), 4 + n))
    a('s_waitcnt vmcnt(0)')
    for n in range(4):
        a('v_xor_b32 v%d, s%d, v%d' % (vP + 2 * n + 1, sT, vP + 2 * n + 1))
    a('v_or3_b32 v%d, v%d, v%d, v%d' % (vT, vP + 1, vP + 3, vP + 5))
    a('v_or_b32 v%d, v%d, v%d' % (vT, vT, vP + 7))
    a('v_cmp_ne_u32 vcc, 0, v%d' % vT)
    a('s_cbranch_vccz L_ep_ok')
    a('s_sub_u32 s%d, s%d, 1' % (sSpin, sSpin))
    a('s_cbranch_scc0 L_ep_poll')
    a.label('L_ep_ok')
    a('v_mov_b32 v%d, s%d' % (vT, sT))
    a('v_mov_b32 v%d, 0' % (vT + 1))
    a('s_mov_b64 exec, 1')
    a('buffer_store_dword v%d, v%d, %s, 0 offen sc1' % (vT, vT + 1, srd(WS)))
    a('s_mov_b64 exec, -1')
    a.label('L_fin')
    if stamps:
        stamp(5)
        a('s_waitcnt vmcnt(0)')
        stamp(6)
        a('s_getreg_b32 s%d, hwreg(HW_REG_XCC_ID)' % (sStamp + 14))
        a('s_mov_b32 s%d, s%d' % (sStamp + 15, sSpin))
        a('s_waitcnt lgkmcnt(0)')
        a('v_mov_b32 v%d, 0' % vT)
        for k in range(16):
            a('v_writelane_b32 v%d, s%d, %d' % (vT, sStamp + k, k))
        a('s_lshl3_add_u32 s%d, s2, s%d' % (sTmp, sW))
        a('s_lshl_b32 s%d, s%d, 6' % (sTmp, sTmp))
        a('s_add_u32 s%d, s%d, 0x%x' % (sTmp, sTmp, STAMP_OFF))
        a('v_lshlrev_b32 v%d, 2, v%d' % (vT + 1, vLane))
        a('s_mov_b64 exec, 0xffff')
        a('buffer_store_dword v%d, v%d, %s, s%d offen' % (vT, vT + 1, srd(WS), sTmp))
    a.label('L_end')
    a('s_endpgm')

    out = HEADER
    out += '; @launch grid=(256,1,1) block=(512,1,1) lds=8192\n'
    out += '.amdgcn_target "amdgcn-amd-amdhsa--gfx950"\n.text\n.globl %s_kernel\n.p2align 8\n' % NAME
    out += '.type %s_kernel,@function\n%s_kernel:\n' % (NAME, NAME)
    out += a.text()
    out += '''.section .rodata,"a"
.p2align 6
.amdhsa_kernel %s_kernel
  .amdhsa_next_free_vgpr 256
  .amdhsa_next_free_sgpr 96
  .amdhsa_accum_offset 256
  .amdhsa_group_segment_fixed_size 0
  .amdhsa_kernarg_size 64
  .amdhsa_user_sgpr_count 2
  .amdhsa_user_sgpr_kernarg_segment_ptr 1
  .amdhsa_system_sgpr_workgroup_id_x 1
  .amdhsa_float_denorm_mode_32 3
.end_amdhsa_kernel
''' % NAME
    return out


if __name__ == '__main__':
    kw = {}
    for arg in sys.argv[2:]:
        k, v = arg.split('=', 1)
        kw[k] = eval(v)
    text = gen(**kw)
    open(sys.argv[1], 'w').write(text)
```

```python
import sys
from asmlib import Asm
from gen2 import HEADER, NAME

ML_OFF = 4096
QX_OFF = 64 << 10
OX_OFF = 384 << 10
Y_OFF = 512 << 10
STAMP_OFF = 1 << 22
LDS_O, LDS_Y = 0, 4352
O_STRIDE = 544
Y_STRIDE = 1088


def gen(F=4, Fend=6, end_at=52, NS=28, order='iiwwwisisi', wgmap='A', kvflag=' nt', wflag=' nt',
        nm=12, Fag=6, gather_at=14, catch=3, poll_at=50, wo_at=(64, 64, 64, 64), stamps=False, fast=True,
        pre_code=True, pre_ox=True, warm=True, outflag='', F0=None, wo_land=None, dbg_noq=False, dbg_nowo=False,
        dbg_nogather=False, dbg_noagent=False, agent_plan=None):
    a = Asm()
    F0 = F0 or F
    dbg_nogather |= dbg_noq
    dbg_noagent |= dbg_noq
    WS_BYTES = (STAMP_OFF + 256 * 8 * 64) if stamps else (1 << 20)
    sW, sH, sB, sS = 20, 21, 22, 23
    K, V, WQ, WO, X, WS, OUT = 24, 28, 32, 36, 40, 44, 48
    sOff, sT, sT0, sT1, sT2, sCS, sSelLo, sSelHi, sSpin = 52, 53, 54, 55, 56, 57, 58, 59, 60
    sTmp, sBH, sIdx, sKoff, sTmp2 = 61, 62, 63, 64, 65
    sStamp = 66
    sTX, sJJ, sFast = 82, 83, 84
    srd = lambda n: 's[%d:%d]' % (n, n + 3)
    vr = lambda n, k=4: 'v[%d:%d]' % (n, n + k - 1)
    vLane, vKV, vWQ, vMask, vQ, vAcc, vU, vA, vX = 1, 2, 3, 4, 8, 12, 16, 24, 32
    vWO, vC, vG, vT = 42, 43, 44, 45
    vQs, vQg, vOw, vOr, vOs, vOg, vYg, vMLs, vMLl, vCo, vCst, vM, vScale, vTag, vYw, vYr = range(48, 64)
    vWb, vRing = 64, 144
    assert vRing + 4 * NS <= 256
    tg = [sT0, sT1, sT0, sT2]

    def stamp(k):
        if stamps:
            a('s_memrealtime s[%d:%d]' % (sStamp + 2 * k, sStamp + 2 * k + 1))

    pos = {'s': [], 'w': [], 'i': []}
    for p, ch in enumerate(order):
        pos[ch].append(p + 10)
    spread = lambda val, ps: sum(((val >> k) & 1) << p for k, p in enumerate(ps))
    cur_off = [None]

    def soff(v):
        if v == 0:
            return '0'
        if cur_off[0] != v:
            a('s_mov_b32 s%d, 0x%x' % (sOff, v))
            cur_off[0] = v
        return 's%d' % sOff

    def kv_load(n):
        off = spread(n % 32, pos['i'])
        s = soff(off - off % 4096)
        a('buffer_load_dwordx4 %s, v%d, %s, %s offen offset:%d%s' %
          (vr(vRing + 4 * (n % NS)), vKV, srd(K if n < 32 else V), s, off % 4096, kvflag), tag=('kv', n))

    def dpp(op, d, s0, s1, ctrl, bank=0xf):
        a('%s_dpp v%d, v%d, v%d %s row_mask:0xf bank_mask:0x%x' % (op, d, s0, s1, ctrl, bank))

    def swap_reduce(op, regs, tmps, which):
        for v, t in zip(regs, tmps):
            a('v_mov_b32 v%d, v%d' % (t, v))
        for v, t in zip(regs, tmps):
            a('v_permlane%d_swap_b32 v%d, v%d' % (which, v, t))
        for v, t in zip(regs, tmps):
            a('%s v%d, v%d, v%d' % (op, v, v, t))

    def untag(base, n, acc, waits=None):
        for j in range(n):
            if waits:
                a('s_waitcnt vmcnt(%d)' % (n - 1 - j))
            for k in range(4):
                a('v_xor_b32 v%d, s%d, v%d' % (base + 4 * j + k, tg[k], base + 4 * j + k))
            if j == 0:
                a('v_or3_b32 v%d, v%d, v%d, v%d' % (acc, base, base + 1, base + 2))
                if n == 1:
                    a('v_bitop3_b32 v%d, v%d, v%d, v%d bitop3:0xa8' % (acc, acc, base + 3, vTag))
                else:
                    a('v_or_b32 v%d, v%d, v%d' % (acc, acc, base + 3))
            else:
                a('v_or3_b32 v%d, v%d, v%d, v%d' % (acc, acc, base + 4 * j, base + 4 * j + 1))
                a('v_or3_b32 v%d, v%d, v%d, v%d' % (acc, acc, base + 4 * j + 2, base + 4 * j + 3))
                for k in (0, 2):
                    a('v_pk_add_f32 %s, %s, %s' % (vr(base + k, 2), vr(base + k, 2), vr(base + 4 * j + k, 2)))
        if n > 1:
            a('v_and_b32 v%d, v%d, v%d' % (acc, vTag, acc))
        a('v_cmp_ne_u32 vcc, 0, v%d' % acc)

    def put_tag(base):
        for k in range(4):
            a('v_bfi_b32 v%d, v%d, s%d, v%d' % (base + k, vTag, tg[k], base + k))

    def spread_s(dst, src, ps, tmp):
        k = 0
        while k < len(ps):
            n = 1
            while k + n < len(ps) and ps[k + n] == ps[k] + n:
                n += 1
            a('s_bfe_u32 s%d, s%d, 0x%x' % (tmp, src, (n << 16) | k))
            a('s_lshl_b32 s%d, s%d, %d' % (tmp, tmp, ps[k]))
            a('s_add_u32 s%d, s%d, s%d' % (dst, dst, tmp))
            k += n

    a('s_cmp_ge_u32 s2, 0x100')
    a('s_cbranch_scc1 L_end')
    a('s_load_dwordx16 s[4:19], s[0:1], 0')
    stamp(0)
    a('v_lshrrev_b32 v%d, 6, v0' % vT)
    a('v_and_b32 v%d, 63, v0' % vLane)
    a('v_readfirstlane_b32 s%d, v%d' % (sW, vT))
    if wgmap == 'A':
        a('s_and_b32 s%d, s2, 31' % sH)
        a('s_bfe_u32 s%d, s2, 0x10005' % sB)
        a('s_lshr_b32 s%d, s2, 6' % sS)
    elif wgmap == 'D':
        a('s_and_b32 s%d, s2, 7' % sH)
        a('s_lshr_b32 s%d, s2, 6' % sTmp)
        a('s_lshl3_add_u32 s%d, s%d, s%d' % (sH, sTmp, sH))
        a('s_bfe_u32 s%d, s2, 0x10005' % sB)
        a('s_bfe_u32 s%d, s2, 0x20003' % sS)
    a('s_lshl_b32 s%d, s%d, 5' % (sBH, sB))
    a('s_add_u32 s%d, s%d, s%d' % (sBH, sBH, sH))
    a('s_lshl2_add_u32 s%d, s%d, s%d' % (sIdx, sB, sS))
    a('s_lshl_b32 s%d, s%d, 22' % (sKoff, sBH))
    a('s_add_u32 s%d, s%d, 0x300000' % (sKoff, sKoff))
    a('s_mov_b32 s%d, 0' % sTmp)
    spread_s(sTmp, sS, pos['s'], sTmp2)
    spread_s(sTmp, sW, pos['w'], sTmp2)
    a('v_lshl_add_u32 v%d, v%d, 4, s%d' % (vKV, vLane, sTmp))
    a('v_and_b32 v%d, 15, v0' % vC)
    a('v_bfe_u32 v%d, v0, 4, 2' % vG)
    a('s_mov_b32 s%d, 0x100000' % (K + 2))
    a('s_mov_b32 s%d, 0x20000' % (K + 3))
    a('s_cmp_eq_u32 s%d, %d' % (sW, 9 if dbg_noagent else 0))
    a('s_cbranch_scc1 L_agent')
    if pre_code:
        a.comment('pull the rest of the code into L2')
        a('s_sub_u32 s%d, s%d, 1' % (sTmp, sW))
        a('s_cmp_gt_u32 s%d, 1' % sTmp)
        a('s_cbranch_scc1 L_nopre')
        a('s_getpc_b64 s[%d:%d]' % (X, X + 1))
        a.label('L_pc')
        a('v_subrev_u32 v%d, 64, v0' % vT)
        a('v_lshlrev_b32 v%d, 7, v%d' % (vT, vT))
        a('v_min_u32 v%d, L_end-L_pc, v%d' % (vT, vT))
        a('global_load_dword v%d, v%d, s[%d:%d]' % (vWQ, vT, X, X + 1))
        a.label('L_nopre')
        a.vm = []
    a('s_waitcnt lgkmcnt(0)')
    a('s_add_u32 s%d, s6, s%d' % (K, sKoff))
    a('s_addc_u32 s%d, s7, 0' % (K + 1))
    a('s_load_dword s%d, s[18:19], 0' % sT)
    for n in range(F0):
        kv_load(n)
    stamp(1)
    a('s_branch L_setup')

    a.label('L_agent')
    a.vm = []
    cur_off[0] = None
    a('v_mul_u32_u24 v%d, 0x%x, v%d' % (vWQ, 20 * 8192, vG))
    a('v_lshl_add_u32 v%d, v%d, 4, v%d' % (vWQ, vC, vWQ))
    a('v_lshrrev_b32 v%d, 3, v%d' % (vT, vC))
    a('v_mul_u32_u24 v%d, 1280, v%d' % (vT, vT))
    a('v_mad_u32_u24 v%d, v%d, 40, v%d' % (vT, vG, vT))
    a('s_mul_i32 s%d, s%d, 160' % (sTmp, sIdx))
    a('v_add_u32 v%d, s%d, v%d' % (vT, sTmp, vT))
    a('s_mul_i32 s%d, s%d, 0x%x' % (sTmp, sIdx, 80 * 8192))
    a('s_lshl_b32 s%d, s%d, 8' % (sTmp2, sH))
    a('s_add_u32 s%d, s%d, s%d' % (sTmp, sTmp, sTmp2))
    a('s_mov_b32 s%d, 0x%x' % (WQ + 2, 79 * 8192 + 256))
    a('s_mov_b32 s%d, 0x20000' % (WQ + 3))
    a('s_mov_b32 s%d, 2560' % (X + 2))
    a('s_mov_b32 s%d, 0x20000' % (X + 3))
    a('s_movk_i32 s%d, 0x2000' % (sFast + 1))
    a('s_mov_b32 s%d, 0' % sFast)
    a('s_waitcnt lgkmcnt(0)')
    a('s_add_u32 s%d, s10, s%d' % (WQ, sTmp))
    a('s_addc_u32 s%d, s11, 0' % (WQ + 1))
    a('s_mov_b32 s%d, s4' % X)
    a('s_mov_b32 s%d, s5' % (X + 1))
    a('s_add_u32 s%d, s6, s%d' % (K, sKoff))
    a('s_addc_u32 s%d, s7, 0' % (K + 1))
    a('s_load_dword s%d, s[18:19], 0' % sT)
    a('buffer_load_dwordx4 %s, v%d, %s, 0 offen' % (vr(vX), vT, srd(X)), tag='x0')
    a('buffer_load_dwordx4 %s, v%d, %s, 0 offen offset:16' % (vr(vX + 4), vT, srd(X)), tag='x1')
    a('buffer_load_dwordx2 %s, v%d, %s, 0 offen offset:32' % (vr(vX + 8, 2), vT, srd(X)), tag='x2')
    sWqOff = sFast

    def wq_load(t):
        a('buffer_load_dwordx4 %s, v%d, %s, s%d offen%s' % (vr(vWb + 4 * t), vWQ, srd(WQ), sWqOff, wflag), tag=('wq', t))
        if t < 19:
            a('s_add_u32 s%d, s%d, s%d' % (sWqOff, sWqOff, sWqOff + 1))

    plan = agent_plan or 'w' * 20 + 'k' * Fag + '|'
    first, rest = plan.split('|')
    rest += 'k' * (nm - plan.count('k'))
    assert plan.count('w') == 20
    cnt = {'w': 0, 'k': 0}

    def agent_issue(ch):
        (wq_load if ch == 'w' else kv_load)(cnt[ch])
        cnt[ch] += 1

    for ch in first:
        agent_issue(ch)
    stamp(1)
    agent_vm = list(a.vm)

    a.label('L_setup')
    cur_off[0] = None
    a('s_add_u32 s%d, s8, s%d' % (V, sKoff))
    a('s_addc_u32 s%d, s9, 0' % (V + 1))
    a('s_mul_i32 s%d, s%d, %d' % (sTmp, sH, 128 * 1280))
    a('s_add_u32 s%d, s12, s%d' % (WO, sTmp))
    a('s_addc_u32 s%d, s13, 0' % (WO + 1))
    a('s_mov_b32 s%d, s18' % WS)
    a('s_mov_b32 s%d, s19' % (WS + 1))
    a('s_mov_b32 s%d, s14' % OUT)
    a('s_mov_b32 s%d, s15' % (OUT + 1))
    for r_, sz in ((V, 0x100000), (WS, WS_BYTES), (OUT, 2560)):
        a('s_mov_b32 s%d, 0x%x' % (r_ + 2, sz))
        a('s_mov_b32 s%d, 0x20000' % (r_ + 3))
    a('s_cmp_lt_u32 s%d, %d' % (sIdx, 0 if dbg_nowo else 5))
    a('s_cselect_b32 s%d, %d, 0' % (WO + 2, 128 * 1280))
    a('s_mov_b32 s%d, 0x20000' % (WO + 3))
    a('s_mov_b32 s%d, 0x3e0293ee' % sCS)
    a('s_mov_b32 s%d, 0x01000100' % sSelLo)
    a('s_mov_b32 s%d, 0x03020302' % sSelHi)
    a('s_mov_b32 s%d, 0x10000' % sSpin)
    a('s_getreg_b32 s%d, hwreg(HW_REG_XCC_ID, 0, 4)' % sTX)
    a('v_and_b32 v%d, 1, v0' % vT)
    a('v_lshlrev_b32 v%d, 4, v%d' % (vT, vT))
    a('v_mov_b32 v%d, 0xffff' % (vT + 1))
    a('v_lshlrev_b32 v%d, v%d, v%d' % (vT, vT, vT + 1))
    a('v_bfe_u32 v%d, v0, 1, 2' % (vT + 1))
    for r in range(4):
        a('v_cmp_eq_u32 vcc, %d, v%d' % (r, vT + 1))
        a('v_cndmask_b32 v%d, 0, v%d, vcc' % (vMask + r, vT))
    a('v_mov_b32 v%d, 0x3ff' % vTag)
    a('v_and_b32 v%d, 31, v0' % vT)
    a('v_lshlrev_b32 v%d, 4, v%d' % (vT, vT))
    a('v_lshrrev_b32 v%d, 5, v%d' % (vT + 1, vLane))
    a('v_xor_b32 v%d, s%d, v%d' % (vT + 2, sB, vT + 1))
    a('v_lshl_add_u32 v%d, v%d, 9, v%d' % (vT + 2, vT + 2, vT))
    a('s_lshl_b32 s%d, s%d, 10' % (sTmp, sH))
    a('s_add_u32 s%d, s%d, %d' % (sTmp, sTmp, ML_OFF))
    a('v_add_u32 v%d, s%d, v%d' % (vMLl, sTmp, vT + 2))
    a('s_lshl3_add_u32 s%d, s%d, s%d' % (sTmp2, sIdx, sW))
    a('s_lshl4_add_u32 s%d, s%d, s%d' % (sTmp, sTmp2, sTmp))
    a('v_mov_b32 v%d, s%d' % (vMLs, sTmp))
    a('v_lshl_add_u32 v%d, v%d, 12, v%d' % (vT, vT + 1, vT))
    a('s_lshl4_add_u32 s%d, s%d, s%d' % (sTmp, sH, sIdx))
    a('s_lshl_b32 s%d, s%d, 9' % (sTmp, sTmp))
    a('s_add_u32 s%d, s%d, %d' % (sTmp, sTmp, QX_OFF))
    a('v_add_u32 v%d, s%d, v%d' % (vQs, sTmp, vT))
    a('s_lshl1_add_u32 s%d, s%d, s%d' % (sTmp, sH, sB))
    a('s_lshl_b32 s%d, s%d, 12' % (sTmp, sTmp))
    a('s_add_u32 s%d, s%d, %d' % (sTmp, sTmp, QX_OFF))
    a('v_lshl_add_u32 v%d, v%d, 4, s%d' % (vQg, vLane, sTmp))
    a('v_and_b32 v%d, 1, v%d' % (vT, vG))
    a('v_lshlrev_b32 v%d, 4, v%d' % (vT, vT))
    a('v_lshl_add_u32 v%d, v%d, 5, v%d' % (vT, vC, vT))
    a('s_mul_i32 s%d, s%d, %d' % (sTmp, sW, O_STRIDE))
    a('v_add_u32 v%d, s%d, v%d' % (vOw, sTmp, vT))
    a('v_and_b32 v%d, 7, v0' % (vT + 1))
    a('v_mul_u32_u24 v%d, %d, v%d' % (vT, O_STRIDE, vT + 1))
    a('v_lshl_add_u32 v%d, v%d, 4, v%d' % (vT, vG, vT))
    a('s_lshl_b32 s%d, s%d, 6' % (sTmp, sW))
    a('v_add_u32 v%d, s%d, v%d' % (vOr, sTmp, vT))
    a('v_mul_u32_u24 v%d, %d, v%d' % (vT, Y_STRIDE, vT + 1))
    a('v_lshrrev_b32 v%d, 3, v0' % (vT + 1))
    a('v_lshl_add_u32 v%d, v%d, 4, v%d' % (vYr, vT + 1, vT))
    a('s_mul_i32 s%d, s%d, %d' % (sTmp, sW, Y_STRIDE))
    a('v_lshl_add_u32 v%d, v%d, 4, s%d' % (vYw, vLane, sTmp))
    a('s_lshl3_add_u32 s%d, s%d, s%d' % (sTmp, sH, sW))
    a('s_lshl_b32 s%d, s%d, 9' % (sTmp, sTmp))
    a('s_add_u32 s%d, s%d, %d' % (sTmp, sTmp, OX_OFF))
    a('v_lshrrev_b32 v%d, 3, v%d' % (vT, vC))
    a('v_and_b32 v%d, 3, v0' % (vT + 1))
    a('v_lshl_add_u32 v%d, v%d, 2, v%d' % (vT, vT, vT + 1))
    a('v_lshl_add_u32 v%d, v%d, 2, v%d' % (vT, vT, vG))
    a('v_lshl_add_u32 v%d, v%d, 4, s%d' % (vOg, vT, sTmp))
    a('s_lshl_b32 s%d, s%d, 6' % (sTmp2, sIdx))
    a('s_add_u32 s%d, s%d, s%d' % (sTmp, sTmp, sTmp2))
    a('v_lshl_add_u32 v%d, v%d, 4, s%d' % (vOs, vG, sTmp))
    a('s_lshl3_add_u32 s%d, s%d, s%d' % (sTmp, sIdx, sW))
    a('s_lshl_b32 s%d, s%d, 5' % (sTmp, sTmp))
    a('s_add_u32 s%d, s%d, s%d' % (sTmp, sTmp, sH))
    a('s_lshl_b32 s%d, s%d, 7' % (sTmp, sTmp))
    a('s_add_u32 s%d, s%d, %d' % (sTmp, sTmp, Y_OFF))
    a('v_lshrrev_b32 v%d, 3, v%d' % (vT, vLane))
    a('v_lshl_add_u32 v%d, v%d, 4, s%d' % (vYg, vT, sTmp))
    a('v_lshrrev_b32 v%d, 4, v0' % vT)
    a('v_mul_u32_u24 v%d, 5120, v%d' % (vWO, vT))
    a('v_lshl_add_u32 v%d, v%d, 4, v%d' % (vWO, vC, vWO))
    a('s_lshl_b32 s%d, s%d, 8' % (sTmp, sIdx))
    a('v_add_u32 v%d, s%d, v%d' % (vWO, sTmp, vWO))
    a('s_lshr_b32 s%d, s%d, 3' % (sJJ, sH))
    a('s_mul_i32 s%d, s%d, 3' % (sJJ, sJJ))
    a('s_add_u32 s%d, s%d, s%d' % (sJJ, sJJ, sIdx))
    a('s_sub_u32 s%d, s%d, 5' % (sJJ, sJJ))
    a('s_and_b32 s%d, s%d, 7' % (sTmp, sH))
    a('s_mul_i32 s%d, s%d, 10' % (sTmp, sTmp))
    a('s_add_u32 s%d, s%d, s%d' % (sTmp, sTmp, sJJ))
    a('s_lshr_b32 s4, s%d, 1' % sTmp)
    a('s_lshl_b32 s4, s4, 12')
    a('s_and_b32 s5, s%d, 1' % sTmp)
    a('s_lshl_b32 s5, s5, 6')
    a('s_add_u32 s4, s4, s5')
    a('s_add_u32 s4, s4, %d' % Y_OFF)
    a('v_lshrrev_b32 v%d, 2, v%d' % (vT, vLane))
    a('v_and_b32 v%d, 3, v0' % (vT + 1))
    a('v_lshl_add_u32 v%d, v%d, 3, v%d' % (vT, vT, vT + 1))
    a('v_lshl_add_u32 v%d, v%d, 4, s4' % (vCo, vT))
    a('s_lshr_b32 s4, s%d, 4' % sTmp)
    a('s_lshl_b32 s4, s4, 7')
    a('s_and_b32 s5, s%d, 3' % sTmp)
    a('s_lshl_b32 s5, s5, 5')
    a('s_add_u32 s4, s4, s5')
    a('s_bfe_u32 s5, s%d, 0x10002' % sTmp)
    a('s_lshl2_add_u32 s4, s5, s4')
    a('s_bfe_u32 s5, s%d, 0x10003' % sTmp)
    a('s_mul_i32 s5, s5, 640')
    a('s_add_u32 s4, s4, s5')
    a('v_lshlrev_b32 v%d, 3, v%d' % (vT + 1, vT + 1))
    a('v_bfe_u32 v%d, v0, 2, 1' % vT)
    a('v_lshl_add_u32 v%d, v%d, 1, v%d' % (vT + 1, vT, vT + 1))
    a('v_bfe_u32 v%d, v0, 3, 1' % vT)
    a('v_add3_u32 v%d, s4, v%d, v%d' % (vCst, vT, vT + 1))
    a('v_lshlrev_b32 v%d, 1, v%d' % (vCst, vCst))
    a('s_waitcnt lgkmcnt(0)')
    a('s_mul_i32 s%d, s%d, 0x9e3779b1' % (sT, sT))
    a('s_add_u32 s%d, s%d, 0x7f4a7c15' % (sT, sT))
    a('s_and_b32 s%d, s%d, 0x3ff' % (sT0, sT))
    a('s_bfe_u32 s%d, s%d, 0xa000a' % (sT1, sT))
    a('s_bfe_u32 s%d, s%d, 0xa0014' % (sT2, sT))
    a('s_lshl4_add_u32 s%d, s%d, s%d' % (sTX, sT, sTX))
    a('s_cmp_eq_u32 s%d, %d' % (sW, 9 if dbg_noagent else 0))
    a('s_cbranch_scc1 L_agent2')
    a.vm = [(('kv', n), True) for n in range(F0)]
    for n in range(F0, nm):
        a.wait_vm(('kv', n - F))
        kv_load(n)
    a('s_branch L_merge')

    a.label('L_agent2')
    a.vm = agent_vm
    cur_off[0] = None
    a.wait_vm('x2')

    def xdup(t):
        a('v_perm_b32 v%d, v%d, v%d, s%d' % (vT + (t & 1), vX + t // 2, vX + t // 2, sSelHi if t & 1 else sSelLo))

    def q_step(t):
        if t == 0:
            xdup(0)
        for r in range(4):
            a('v_and_b32 v%d, v%d, v%d' % (vA + r, vT + (t & 1), vMask + r))
        if t < 19:
            xdup(t + 1)
        a.wait_vm(('wq', t))
        a('v_mfma_f32_16x16x32_bf16 %s, %s, %s, %s' % (vr(vAcc), vr(vA), vr(vWb + 4 * t), vr(vAcc) if t else '0'))
        if t == 19:
            put_tag(vAcc)
            a('buffer_store_dwordx4 %s, v%d, %s, 0 offen sc1' % (vr(vAcc), vQs, srd(WS)), tag='qst')

    tq = 0
    for ch in rest:
        while sum(1 for _, ld in a.vm if ld) >= Fag:
            oldest = [t for t, ld in a.vm if ld][0]
            if oldest[0] == 'wq':
                assert oldest[1] == tq
                q_step(tq)
                tq += 1
            else:
                a.wait_vm(oldest)
        agent_issue(ch)
    assert tq == 20
    assert [t for t, ld in a.vm if ld][-F:] == [('kv', n) for n in range(nm - F, nm)]

    a.label('L_merge')
    a.vm = [(('kv', n), True) for n in range(nm - max(F, Fag), nm)]
    cur_off[0] = None

    vPoll = vX + 4
    vS, vTT = vX, vX + 8
    pend = []
    bank_of = [0, 2, 1, 3]
    state = {'polled': False, 'scaled': False, 'q': False, 'qg': False}

    def qgather():
        for j in range(4):
            a('buffer_load_dwordx4 %s, v%d, %s, 0 offen offset:%d sc1' % (vr(vWb + 4 * j), vQg, srd(WS), 1024 * j),
              tag=('qg', j))

    def q_code():
        a.comment('q of this (batch, head): sum of the eight row-block products')
        a.label('L_q_check')
        untag(vWb, 4, vT)
        if not (dbg_nogather or dbg_noagent):
            a('s_cbranch_vccnz L_q_retry')
        a.label('L_q_ok')
        swap_reduce('v_add_f32', range(vWb, vWb + 4), range(vWb + 4, vWb + 8), 32)
        a('v_cvt_pk_bf16_f32 v%d, v%d, v%d' % (vQ, vWb, vWb + 1))
        a('v_cvt_pk_bf16_f32 v%d, v%d, v%d' % (vQ + 1, vWb + 2, vWb + 3))
        a('v_mov_b32 v%d, v%d' % (vQ + 2, vQ))
        a('v_mov_b32 v%d, v%d' % (vQ + 3, vQ + 1))
        a('v_permlane16_swap_b32 v%d, v%d' % (vQ, vQ + 2))
        a('v_permlane16_swap_b32 v%d, v%d' % (vQ + 1, vQ + 3))
        state['q'] = True
        stamp(2)

    def score(n):
        rb = vRing + 4 * (n % NS)
        s = vS + (n & 7)
        for k in range(4):
            a('v_dot2_f32_bf16 v%d, v%d, v%d, %s' % (s, rb + k, vQ + k, 'v%d' % s if k else '0'))
            if pend and k in (0, 2):
                pend.pop(0)()
        if n % 4 == 3:
            assert not pend
            s0 = vS + (n & 4)
            u = vU + n // 4
            pend.extend([
                lambda: dpp('v_add_f32', vTT, s0, s0, 'row_ror:8', 0x3),
                lambda: dpp('v_add_f32', vTT, s0 + 1, s0 + 1, 'row_ror:8', 0xc),
                lambda: dpp('v_add_f32', vTT + 1, s0 + 2, s0 + 2, 'row_ror:8', 0x3),
                lambda: dpp('v_add_f32', vTT + 1, s0 + 3, s0 + 3, 'row_ror:8', 0xc),
                lambda: dpp('v_add_f32', u, vTT, vTT, 'row_shl:4', 0x5),
                lambda: dpp('v_add_f32', u, vTT + 1, vTT + 1, 'row_shr:4', 0xa),
                lambda: dpp('v_add_f32', u, u, u, 'quad_perm:[1,0,3,2]'),
                lambda: dpp('v_add_f32', u, u, u, 'quad_perm:[2,3,0,1]'),
            ])

    def softmax():
        while pend:
            pend.pop(0)()
        stamp(3)
        a('v_max3_f32 v%d, v%d, v%d, v%d' % (vM, vU, vU + 1, vU + 2))
        a('v_max3_f32 v%d, v%d, v%d, v%d' % (vM, vM, vU + 3, vU + 4))
        a('v_max3_f32 v%d, v%d, v%d, v%d' % (vM, vM, vU + 5, vU + 6))
        a('v_max_f32 v%d, v%d, v%d' % (vM, vM, vU + 7))
        dpp('v_max_f32', vM, vM, vM, 'row_ror:4')
        dpp('v_max_f32', vM, vM, vM, 'row_ror:8')
        swap_reduce('v_max_f32', [vM], [vT], 16)
        swap_reduce('v_max_f32', [vM], [vT], 32)
        a('v_mul_f32 v%d, s%d, v%d' % (vM, sCS, vM))
        for k in range(8):
            a('v_fma_f32 v%d, v%d, s%d, -v%d' % (vU + k, vU + k, sCS, vM))
        for k in range(8):
            a('v_exp_f32 v%d, v%d' % (vU + k, vU + k))
        vML = vX
        a('v_add_f32 v%d, v%d, v%d' % (vML + 2, vU, vU + 1))
        for k in range(2, 8):
            a('v_add_f32 v%d, v%d, v%d' % (vML + 2, vML + 2, vU + k))
        for k in range(8):
            a('v_cvt_pk_bf16_f32 v%d, v%d, v%d' % (vU + k, vU + k, vU + k))
        dpp('v_add_f32', vML + 2, vML + 2, vML + 2, 'row_ror:4')
        a('v_mov_b32 v%d, v%d' % (vML, vM))
        a('v_mov_b32 v%d, s%d' % (vML + 1, sT))
        dpp('v_add_f32', vML + 2, vML + 2, vML + 2, 'row_ror:8')
        a('v_mov_b32 v%d, s%d' % (vML + 3, sTX))
        swap_reduce('v_add_f32', [vML + 2], [vT], 16)
        swap_reduce('v_add_f32', [vML + 2], [vT], 32)
        a('s_mov_b64 exec, 1')
        a('buffer_store_dwordx4 %s, v%d, %s, 0 offen sc1' % (vr(vML), vMLs, srd(WS)), tag='mlst')
        a('s_mov_b64 exec, -1')
        build_a(0)

    def build_a(i):
        for r in range(4):
            a('v_and_b32_dpp v%d, v%d, v%d row_newbcast:%d row_mask:0xf bank_mask:0xf' %
              (vA + 4 * (i & 1) + r, vU + i // 4, vMask + r, 4 * bank_of[i % 4]))

    def scale_code():
        a.comment('combine the 32 wave statistics of this (batch, head); compare the dies of the head group')
        a.label('L_ml_check')
        a('v_xor_b32 v%d, s%d, v%d' % (vT, sT, vPoll + 1))
        a('v_xor_b32 v%d, s%d, v%d' % (vT + 1, sTX, vPoll + 3))
        a('v_and_or_b32 v%d, v%d, -16, v%d' % (vT, vT + 1, vT))
        a('v_cmp_ne_u32 vcc, 0, v%d' % vT)
        a('s_cbranch_vccnz L_ml_retry')
        a.label('L_ml_ok')
        a('v_cmp_ne_u32 s[%d:%d], 0, v%d' % (sFast, sFast + 1, vT + 1))
        vMM = vT + 1
        dpp('v_max_f32', vMM, vPoll, vPoll, 'quad_perm:[1,0,3,2]')
        dpp('v_max_f32', vMM, vMM, vMM, 'quad_perm:[2,3,0,1]')
        dpp('v_max_f32', vMM, vMM, vMM, 'row_ror:4')
        dpp('v_max_f32', vMM, vMM, vMM, 'row_ror:8')
        swap_reduce('v_max_f32', [vMM], [vT], 16)
        a('v_sub_f32 v%d, v%d, v%d' % (vPoll, vPoll, vMM))
        a('v_sub_f32 v%d, v%d, v%d' % (vScale, vM, vMM))
        a('v_exp_f32 v%d, v%d' % (vPoll, vPoll))
        a('v_exp_f32 v%d, v%d' % (vScale, vScale))
        a('v_mul_f32 v%d, v%d, v%d' % (vPoll, vPoll, vPoll + 2))
        dpp('v_add_f32', vPoll, vPoll, vPoll, 'quad_perm:[1,0,3,2]')
        dpp('v_add_f32', vPoll, vPoll, vPoll, 'quad_perm:[2,3,0,1]')
        dpp('v_add_f32', vPoll, vPoll, vPoll, 'row_ror:4')
        dpp('v_add_f32', vPoll, vPoll, vPoll, 'row_ror:8')
        swap_reduce('v_add_f32', [vPoll], [vT], 16)
        a('v_rcp_f32 v%d, v%d' % (vPoll, vPoll))
        a('v_mul_f32 v%d, v%d, v%d' % (vScale, vScale, vPoll))
        state['scaled'] = True

    def process(n):
        if n < 32:
            score(n)
            if n == 31:
                softmax()
            return
        i = n - 32
        if state['polled'] and not state['scaled'] and 'poll' not in [t for t, _ in a.vm]:
            scale_code()
        a('v_mfma_f32_16x16x32_bf16 %s, %s, %s, %s' %
          (vr(vAcc), vr(vA + 4 * (i & 1)), vr(vRing + 4 * (n % NS)), vr(vAcc) if i else '0'))
        if i < 31:
            build_a(i + 1)

    def extras(n):
        if n == gather_at:
            if not dbg_nogather:
                qgather()
            state['qg'] = True
        if n == poll_at:
            assert done > 32
            if pre_ox:
                a('buffer_load_dword v%d, v%d, %s, 0 offen sc1' % (vWQ, vOg, srd(WS)), tag='preox')
            a('buffer_load_dwordx4 %s, v%d, %s, 0 offen sc1' % (vr(vPoll), vMLl, srd(WS)), tag='poll')
            state['polled'] = True
        for t in range(4):
            if wo_land is None and wo_at[t] == n:
                wo_load(t)

    def wo_load(t):
        assert state['q']
        a('buffer_load_dwordx4 %s, v%d, %s, 0 offen offset:%d%s' %
          (vr(vWb + 4 * t), vWO, srd(WO), 1280 * t, wflag), tag=('wo', t))

    assert gather_at >= nm
    issued, done, landed = nm, 0, nm - F
    while done < 64:
        if landed < 64:
            assert landed < issued
            a.wait_vm(('kv', landed))
            landed += 1
        while issued < 64 and issued - landed < (Fend if issued >= end_at else F):
            assert issued - done < NS
            extras(issued)
            kv_load(issued)
            issued += 1
            if issued == 64:
                extras(64)
        for t in range(4):
            if wo_land is not None and wo_land[t] == landed and ('wo', t) not in a.issued:
                wo_load(t)
        if not state['q']:
            if state['qg'] and ('qg', 3) not in [t for t, _ in a.vm]:
                q_code()
            continue
        for _ in range(catch):
            if done < landed:
                process(done)
                done += 1
    assert state['scaled']
    stamp(4)

    a('s_mov_b32 s4, 0x00010001')
    a('s_mov_b32 s5, 0x00010001')
    a('s_mov_b32 s6, 0x01010101')
    a('s_mov_b32 s7, 0x01010101')
    a('s_mov_b32 exec_hi, 0')
    for r in range(4):
        a('v_mul_f32 v%d, v%d, v%d' % (vAcc + r, vScale, vAcc + r))
    a('ds_write_b128 v%d, %s offset:%d' % (vOw, vr(vAcc), LDS_O))
    a('s_mov_b64 exec, -1')
    a('s_cmp_eq_u64 s[%d:%d], 0' % (sFast, sFast + 1))
    a('s_waitcnt lgkmcnt(0)')
    a('s_barrier')
    vO = vU
    a('ds_read_b128 %s, v%d offset:%d' % (vr(vO), vOr, LDS_O))
    a('s_waitcnt lgkmcnt(0)')
    for ctrl in ('quad_perm:[1,0,3,2]', 'quad_perm:[2,3,0,1]', 'row_half_mirror'):
        for t in range(4):
            dpp('v_add_f32', vO + t, vO + t, vO + t, ctrl)
    put_tag(vO)
    a('s_mov_b64 exec, s[4:5]')
    if fast:
        a('s_cbranch_scc0 L_o_far')
        a('buffer_store_dwordx4 %s, v%d, %s, 0 offen' % (vr(vO), vOs, srd(WS)))
        a.label('L_o_sent')
    else:
        a('buffer_store_dwordx4 %s, v%d, %s, 0 offen sc1' % (vr(vO), vOs, srd(WS)))
    a('s_mov_b64 exec, -1')
    a('s_cmp_ge_u32 s%d, 5' % sIdx)
    a('s_cbranch_scc1 L_not_proj')
    vP = vRing
    a.label('L_o_poll')
    a('buffer_load_dwordx4 %s, v%d, %s, 0 offen sc1' % (vr(vP), vOg, srd(WS)))
    a('s_waitcnt vmcnt(0)')
    a.vm = []
    untag(vP, 1, vT)
    a('s_cbranch_vccnz L_o_retry')
    a.label('L_o_ok')
    for ctrl in ('quad_perm:[1,0,3,2]', 'quad_perm:[2,3,0,1]'):
        for t in range(4):
            dpp('v_add_f32', vP + t, vP + t, vP + t, ctrl)
    for t in range(4):
        a('v_cvt_pk_bf16_f32 v%d, v%d, v%d' % (vP + t, vP + t, vP + t))
    vA2 = vRing + 4
    for t in range(4):
        for r in range(4):
            a('v_and_b32 v%d, v%d, v%d' % (vA2 + 4 * t + r, vP + t, vMask + r))
        if t:
            a('v_mfma_f32_16x16x32_bf16 %s, %s, %s, %s' %
              (vr(vAcc), vr(vA2 + 4 * t - 4), vr(vWb + 4 * t - 4), vr(vAcc) if t > 1 else '0'))
    a('v_mfma_f32_16x16x32_bf16 %s, %s, %s, %s' % (vr(vAcc), vr(vA2 + 12), vr(vWb + 12), vr(vAcc)))
    a('ds_write_b128 v%d, %s offset:%d' % (vYw, vr(vAcc), LDS_Y))
    a('s_waitcnt lgkmcnt(0)')
    a('s_barrier')
    a('ds_read_b128 %s, v%d offset:%d' % (vr(vP), vYr, LDS_Y))
    a('s_waitcnt lgkmcnt(0)')
    for ctrl in ('quad_perm:[1,0,3,2]', 'quad_perm:[2,3,0,1]', 'row_half_mirror'):
        for t in range(4):
            dpp('v_add_f32', vP + t, vP + t, vP + t, ctrl)
    put_tag(vP)
    a('s_mov_b64 exec, s[6:7]')
    a('buffer_store_dwordx4 %s, v%d, %s, 0 offen sc1' % (vr(vP), vYg, srd(WS)))
    if stamps:
        a('s_mov_b64 exec, -1')
        a('s_branch L_fin')
    else:
        a('s_endpgm')
    a.label('L_o_retry')
    a('s_sub_u32 s%d, s%d, 1' % (sSpin, sSpin))
    a('s_cbranch_scc0 L_o_poll')
    a('s_nop 1')
    a('s_branch L_o_ok')
    if fast:
        a.label('L_o_far')
        a('buffer_store_dwordx4 %s, v%d, %s, 0 offen sc1' % (vr(vO), vOs, srd(WS)))
        a('s_branch L_o_sent')

    a.label('L_not_proj')
    a('s_cmp_lg_u32 s%d, 0' % sW)
    a('s_cbranch_scc1 L_fin')
    a('s_cmp_ge_u32 s%d, 10' % sJJ)
    a('s_cbranch_scc1 L_not_cons')
    if warm:
        a('s_mov_b64 vcc, -1')
        a('s_branch L_cons_ok')
    a.label('L_cons_poll')
    for n in range(2):
        a('buffer_load_dwordx4 %s, v%d, %s, 0 offen offset:%d sc1' % (vr(vP + 4 * n), vCo, srd(WS), 2048 * n))
    untag(vP, 2, vT, waits=True)
    a.vm = []
    a('s_cbranch_vccnz L_cons_retry')
    a.label('L_cons_ok')
    dpp('v_add_f32', vT, vP, vP, 'row_ror:8', 0x3)
    dpp('v_add_f32', vT + 1, vP + 2, vP + 2, 'row_ror:8', 0x3)
    dpp('v_add_f32', vT, vP + 1, vP + 1, 'row_ror:8', 0xc)
    dpp('v_add_f32', vT + 1, vP + 3, vP + 3, 'row_ror:8', 0xc)
    dpp('v_add_f32', vP, vT, vT, 'row_shl:4', 0x5)
    dpp('v_add_f32', vP, vT + 1, vT + 1, 'row_shr:4', 0xa)
    swap_reduce('v_add_f32', [vP], [vT], 16)
    swap_reduce('v_add_f32', [vP], [vT], 32)
    a('v_cvt_pk_bf16_f32 v%d, v%d, v%d' % (vP, vP, vP))
    if warm:
        a('s_cbranch_vccnz L_cons_poll')
    a('s_mov_b64 exec, 0xffff')
    a('buffer_store_short v%d, v%d, %s, 0 offen%s' % (vP, vCst, srd(OUT), outflag))
    if stamps:
        a('s_mov_b64 exec, -1')
        a('s_branch L_fin')
    else:
        a('s_endpgm')
    a.label('L_cons_retry')
    a('s_sub_u32 s%d, s%d, 1' % (sSpin, sSpin))
    a('s_cbranch_scc0 L_cons_poll')
    a('s_mov_b64 vcc, 0')
    a('s_branch L_cons_ok')

    a.label('L_ml_retry')
    a('s_sub_u32 s%d, s%d, 1' % (sSpin, sSpin))
    a('s_cbranch_scc1 L_ml_ok')
    a('buffer_load_dwordx4 %s, v%d, %s, 0 offen sc1' % (vr(vPoll), vMLl, srd(WS)))
    a('s_waitcnt vmcnt(0)')
    a('s_branch L_ml_check')

    a.label('L_q_retry')
    a('s_sub_u32 s%d, s%d, 1' % (sSpin, sSpin))
    a('s_cbranch_scc1 L_q_ok')
    qgather()
    a('s_waitcnt vmcnt(0)')
    a('s_branch L_q_check')

    a.label('L_not_cons')
    a('s_lshl3_add_u32 s%d, s%d, s%d' % (sTmp, sH, sIdx))
    a('s_cmp_lg_u32 s%d, 0xff' % sTmp)
    a('s_cbranch_scc1 L_fin')
    a('v_lshlrev_b32 v%d, 4, v%d' % (vT + 1, vLane))
    a.label('L_ep_poll')
    a('s_mov_b32 s4, %d' % ML_OFF)
    for n in range(32):
        a('buffer_load_dword v%d, v%d, %s, s4 offen offset:%d sc1' % (vP + n, vT + 1, srd(WS), 1024 * (n % 4) + 4))
        if n % 4 == 3 and n < 31:
            a('s_add_u32 s4, s4, 0x1000')
    a('s_waitcnt vmcnt(0)')
    a('v_xor_b32 v%d, s%d, v%d' % (vT, sT, vP))
    for n in range(1, 32):
        a('v_bitop3_b32 v%d, v%d, s%d, v%d bitop3:0xf6' % (vT, vT, sT, vP + n))
    a('v_cmp_ne_u32 vcc, 0, v%d' % vT)
    a('s_cbranch_vccz L_ep_ok')
    a('s_sub_u32 s%d, s%d, 1' % (sSpin, sSpin))
    a('s_cbranch_scc0 L_ep_poll')
    a.label('L_ep_ok')
    a('v_mov_b32 v%d, s%d' % (vT, sT))
    a('v_mov_b32 v%d, 0' % (vT + 1))
    a('s_mov_b64 exec, 1')
    a('buffer_store_dword v%d, v%d, %s, 0 offen sc1' % (vT, vT + 1, srd(WS)))
    a('s_mov_b64 exec, -1')
    a.label('L_fin')
    if stamps:
        stamp(5)
        a('s_waitcnt vmcnt(0)')
        stamp(6)
        a('s_getreg_b32 s%d, hwreg(HW_REG_XCC_ID)' % (sStamp + 14))
        a('s_mov_b32 s%d, s%d' % (sStamp + 15, sSpin))
        a('s_waitcnt lgkmcnt(0)')
        a('v_mov_b32 v%d, 0' % vT)
        for k in range(16):
            a('v_writelane_b32 v%d, s%d, %d' % (vT, sStamp + k, k))
        a('s_lshl3_add_u32 s%d, s2, s%d' % (sTmp, sW))
        a('s_lshl_b32 s%d, s%d, 6' % (sTmp, sTmp))
        a('s_add_u32 s%d, s%d, 0x%x' % (sTmp, sTmp, STAMP_OFF))
        a('v_lshlrev_b32 v%d, 2, v%d' % (vT + 1, vLane))
        a('s_mov_b64 exec, 0xffff')
        a('buffer_store_dword v%d, v%d, %s, s%d offen' % (vT, vT + 1, srd(WS), sTmp))
    a.label('L_end')
    a('s_endpgm')

    out = HEADER
    out += '; @launch grid=(256,1,1) block=(512,1,1) lds=16384\n'
    out += '.amdgcn_target "amdgcn-amd-amdhsa--gfx950"\n.text\n.globl %s_kernel\n.p2align 8\n' % NAME
    out += '.type %s_kernel,@function\n%s_kernel:\n' % (NAME, NAME)
    out += a.text()
    out += '''.section .rodata,"a"
.p2align 6
.amdhsa_kernel %s_kernel
  .amdhsa_next_free_vgpr 256
  .amdhsa_next_free_sgpr 96
  .amdhsa_accum_offset 256
  .amdhsa_group_segment_fixed_size 0
  .amdhsa_kernarg_size 64
  .amdhsa_user_sgpr_count 2
  .amdhsa_user_sgpr_kernarg_segment_ptr 1
  .amdhsa_system_sgpr_workgroup_id_x 1
  .amdhsa_float_denorm_mode_32 3
.end_amdhsa_kernel
''' % NAME
    return out


if __name__ == '__main__':
    kw = {}
    for arg in sys.argv[2:]:
        k, v = arg.split('=', 1)
        kw[k] = eval(v)
    text = gen(**kw)
    open(sys.argv[1], 'w').write(text)
```

```python
import sys
from asmlib import Asm
from gen2 import HEADER, NAME

ML_OFF = 4096
QX_OFF = 64 << 10
OX_OFF = 384 << 10
Y_OFF = 512 << 10
STAMP_OFF = 1 << 22
LDS_O, LDS_Y = 0, 4352
O_STRIDE = 544
Y_STRIDE = 1088


def gen(F=4, Fend=6, end_at=52, NS=28, order='iiwwwisisi', wgmap='A', kvflag=' nt', wflag=' nt',
        nm=12, Fag=6, gather_at=14, catch=3, poll_at=50, wo_at=(64, 64, 64, 64), stamps=False, fast=True,
        pre_code=True, pre_ox=True, warm=True, outflag='', F0=None, wo_land=None, dbg_noq=False, dbg_nowo=False,
        dbgout=False, dbg_nogather=False, dbg_noagent=False, agent_plan=None):
    a = Asm()
    F0 = F0 or F
    dbg_nogather |= dbg_noq
    dbg_noagent |= dbg_noq
    WS_BYTES = (STAMP_OFF + 256 * 8 * 64) if stamps else (1 << 20)
    sW, sH, sB, sS = 20, 21, 22, 23
    K, V, WQ, WO, X, WS, OUT = 24, 28, 32, 36, 40, 44, 48
    sOff, sT, sT0, sT1, sT2, sCS, sSelLo, sSelHi, sSpin = 52, 53, 54, 55, 56, 57, 58, 59, 60
    sTmp, sBH, sIdx, sKoff, sTmp2 = 61, 62, 63, 64, 65
    sStamp = 66
    sTX, sJJ, sFast = 82, 83, 84
    srd = lambda n: 's[%d:%d]' % (n, n + 3)
    vr = lambda n, k=4: 'v[%d:%d]' % (n, n + k - 1)
    vLane, vKV, vWQ, vMask, vQ, vAcc, vU, vA, vX = 1, 2, 3, 4, 8, 12, 16, 24, 32
    vWO, vC, vG, vT = 42, 43, 44, 45
    vQs, vQg, vOw, vOr, vOs, vOg, vYg, vMLs, vMLl, vCo, vCst, vM, vScale, vTag, vYw, vYr = range(48, 64)
    vWb, vRing = 64, 144
    assert vRing + 4 * NS <= 256
    tg = [sT0, sT1, sT0, sT2]

    def stamp(k):
        if stamps:
            a('s_memrealtime s[%d:%d]' % (sStamp + 2 * k, sStamp + 2 * k + 1))

    pos = {'s': [], 'w': [], 'i': []}
    for p, ch in enumerate(order):
        pos[ch].append(p + 10)
    spread = lambda val, ps: sum(((val >> k) & 1) << p for k, p in enumerate(ps))
    cur_off = [None]

    def soff(v):
        if v == 0:
            return '0'
        if cur_off[0] != v:
            a('s_mov_b32 s%d, 0x%x' % (sOff, v))
            cur_off[0] = v
        return 's%d' % sOff

    def kv_load(n):
        off = spread(n % 32, pos['i'])
        s = soff(off - off % 4096)
        a('buffer_load_dwordx4 %s, v%d, %s, %s offen offset:%d%s' %
          (vr(vRing + 4 * (n % NS)), vKV, srd(K if n < 32 else V), s, off % 4096, kvflag), tag=('kv', n))

    def dpp(op, d, s0, s1, ctrl, bank=0xf):
        a('%s_dpp v%d, v%d, v%d %s row_mask:0xf bank_mask:0x%x' % (op, d, s0, s1, ctrl, bank))

    def swap_reduce(op, regs, tmps, which):
        for v, t in zip(regs, tmps):
            a('v_mov_b32 v%d, v%d' % (t, v))
        for v, t in zip(regs, tmps):
            a('v_permlane%d_swap_b32 v%d, v%d' % (which, v, t))
        for v, t in zip(regs, tmps):
            a('%s v%d, v%d, v%d' % (op, v, v, t))

    def untag(base, n, acc, waits=None):
        for j in range(n):
            if waits:
                a('s_waitcnt vmcnt(%d)' % (n - 1 - j))
            for k in range(4):
                a('v_xor_b32 v%d, s%d, v%d' % (base + 4 * j + k, tg[k], base + 4 * j + k))
            if j == 0:
                a('v_or3_b32 v%d, v%d, v%d, v%d' % (acc, base, base + 1, base + 2))
                if n == 1:
                    a('v_bitop3_b32 v%d, v%d, v%d, v%d bitop3:0xa8' % (acc, acc, base + 3, vTag))
                else:
                    a('v_or_b32 v%d, v%d, v%d' % (acc, acc, base + 3))
            else:
                a('v_or3_b32 v%d, v%d, v%d, v%d' % (acc, acc, base + 4 * j, base + 4 * j + 1))
                a('v_or3_b32 v%d, v%d, v%d, v%d' % (acc, acc, base + 4 * j + 2, base + 4 * j + 3))
                for k in (0, 2):
                    a('v_pk_add_f32 %s, %s, %s' % (vr(base + k, 2), vr(base + k, 2), vr(base + 4 * j + k, 2)))
        if n > 1:
            a('v_and_b32 v%d, v%d, v%d' % (acc, vTag, acc))
        a('v_cmp_ne_u32 vcc, 0, v%d' % acc)

    def put_tag(base):
        for k in range(4):
            a('v_bfi_b32 v%d, v%d, s%d, v%d' % (base + k, vTag, tg[k], base + k))

    def spread_s(dst, src, ps, tmp):
        k = 0
        while k < len(ps):
            n = 1
            while k + n < len(ps) and ps[k + n] == ps[k] + n:
                n += 1
            a('s_bfe_u32 s%d, s%d, 0x%x' % (tmp, src, (n << 16) | k))
            a('s_lshl_b32 s%d, s%d, %d' % (tmp, tmp, ps[k]))
            a('s_add_u32 s%d, s%d, s%d' % (dst, dst, tmp))
            k += n

    a('s_cmp_ge_u32 s2, 0x100')
    a('s_cbranch_scc1 L_end')
    a('s_load_dwordx16 s[4:19], s[0:1], 0')
    stamp(0)
    a('v_lshrrev_b32 v%d, 6, v0' % vT)
    a('v_and_b32 v%d, 63, v0' % vLane)
    a('v_readfirstlane_b32 s%d, v%d' % (sW, vT))
    if wgmap == 'A':
        a('s_and_b32 s%d, s2, 31' % sH)
        a('s_bfe_u32 s%d, s2, 0x10005' % sB)
        a('s_lshr_b32 s%d, s2, 6' % sS)
    elif wgmap == 'D':
        a('s_and_b32 s%d, s2, 7' % sH)
        a('s_lshr_b32 s%d, s2, 6' % sTmp)
        a('s_lshl3_add_u32 s%d, s%d, s%d' % (sH, sTmp, sH))
        a('s_bfe_u32 s%d, s2, 0x10005' % sB)
        a('s_bfe_u32 s%d, s2, 0x20003' % sS)
    a('s_lshl_b32 s%d, s%d, 5' % (sBH, sB))
    a('s_add_u32 s%d, s%d, s%d' % (sBH, sBH, sH))
    a('s_lshl2_add_u32 s%d, s%d, s%d' % (sIdx, sB, sS))
    a('s_lshl_b32 s%d, s%d, 22' % (sKoff, sBH))
    a('s_add_u32 s%d, s%d, 0x300000' % (sKoff, sKoff))
    a('s_mov_b32 s%d, 0' % sTmp)
    spread_s(sTmp, sS, pos['s'], sTmp2)
    spread_s(sTmp, sW, pos['w'], sTmp2)
    a('v_lshl_add_u32 v%d, v%d, 4, s%d' % (vKV, vLane, sTmp))
    a('v_and_b32 v%d, 15, v0' % vC)
    a('v_bfe_u32 v%d, v0, 4, 2' % vG)
    a('s_mov_b32 s%d, 0x100000' % (K + 2))
    a('s_mov_b32 s%d, 0x20000' % (K + 3))
    a('s_cmp_eq_u32 s%d, %d' % (sW, 9 if dbg_noagent else 0))
    a('s_cbranch_scc1 L_agent')
    if pre_code:
        a.comment('pull the rest of the code into L2')
        a('s_sub_u32 s%d, s%d, 1' % (sTmp, sW))
        a('s_cmp_gt_u32 s%d, 1' % sTmp)
        a('s_cbranch_scc1 L_nopre')
        a('s_getpc_b64 s[%d:%d]' % (X, X + 1))
        a.label('L_pc')
        a('v_subrev_u32 v%d, 64, v0' % vT)
        a('v_lshlrev_b32 v%d, 7, v%d' % (vT, vT))
        a('v_min_u32 v%d, L_end-L_pc, v%d' % (vT, vT))
        a('global_load_dword v%d, v%d, s[%d:%d]' % (vWQ, vT, X, X + 1))
        a.label('L_nopre')
        a.vm = []
    a('s_waitcnt lgkmcnt(0)')
    a('s_add_u32 s%d, s6, s%d' % (K, sKoff))
    a('s_addc_u32 s%d, s7, 0' % (K + 1))
    a('s_load_dword s%d, s[18:19], 0' % sT)
    for n in range(F0):
        kv_load(n)
    stamp(1)
    a('s_branch L_setup')

    a.label('L_agent')
    a.vm = []
    cur_off[0] = None
    a('v_mul_u32_u24 v%d, 0x%x, v%d' % (vWQ, 20 * 8192, vG))
    a('v_lshl_add_u32 v%d, v%d, 4, v%d' % (vWQ, vC, vWQ))
    a('v_lshrrev_b32 v%d, 3, v%d' % (vT, vC))
    a('v_mul_u32_u24 v%d, 1280, v%d' % (vT, vT))
    a('v_mad_u32_u24 v%d, v%d, 40, v%d' % (vT, vG, vT))
    a('s_mul_i32 s%d, s%d, 160' % (sTmp, sIdx))
    a('v_add_u32 v%d, s%d, v%d' % (vT, sTmp, vT))
    a('s_mul_i32 s%d, s%d, 0x%x' % (sTmp, sIdx, 80 * 8192))
    a('s_lshl_b32 s%d, s%d, 8' % (sTmp2, sH))
    a('s_add_u32 s%d, s%d, s%d' % (sTmp, sTmp, sTmp2))
    a('s_mov_b32 s%d, 0x%x' % (WQ + 2, 79 * 8192 + 256))
    a('s_mov_b32 s%d, 0x20000' % (WQ + 3))
    a('s_mov_b32 s%d, 2560' % (X + 2))
    a('s_mov_b32 s%d, 0x20000' % (X + 3))
    a('s_movk_i32 s%d, 0x2000' % (sFast + 1))
    a('s_mov_b32 s%d, 0' % sFast)
    a('s_waitcnt lgkmcnt(0)')
    a('s_add_u32 s%d, s10, s%d' % (WQ, sTmp))
    a('s_addc_u32 s%d, s11, 0' % (WQ + 1))
    a('s_mov_b32 s%d, s4' % X)
    a('s_mov_b32 s%d, s5' % (X + 1))
    a('s_add_u32 s%d, s6, s%d' % (K, sKoff))
    a('s_addc_u32 s%d, s7, 0' % (K + 1))
    a('s_load_dword s%d, s[18:19], 0' % sT)
    a('buffer_load_dwordx4 %s, v%d, %s, 0 offen' % (vr(vX), vT, srd(X)), tag='x0')
    a('buffer_load_dwordx4 %s, v%d, %s, 0 offen offset:16' % (vr(vX + 4), vT, srd(X)), tag='x1')
    a('buffer_load_dwordx2 %s, v%d, %s, 0 offen offset:32' % (vr(vX + 8, 2), vT, srd(X)), tag='x2')
    sWqOff = sFast

    def wq_load(t):
        a('buffer_load_dwordx4 %s, v%d, %s, s%d offen%s' % (vr(vWb + 4 * t), vWQ, srd(WQ), sWqOff, wflag), tag=('wq', t))
        if t < 19:
            a('s_add_u32 s%d, s%d, s%d' % (sWqOff, sWqOff, sWqOff + 1))

    plan = agent_plan or 'w' * 20 + 'k' * Fag + '|'
    first, rest = plan.split('|')
    rest += 'k' * (nm - plan.count('k'))
    assert plan.count('w') == 20
    cnt = {'w': 0, 'k': 0}

    def agent_issue(ch):
        (wq_load if ch == 'w' else kv_load)(cnt[ch])
        cnt[ch] += 1

    for ch in first:
        agent_issue(ch)
    stamp(1)
    agent_vm = list(a.vm)

    a.label('L_setup')
    cur_off[0] = None
    a('s_add_u32 s%d, s8, s%d' % (V, sKoff))
    a('s_addc_u32 s%d, s9, 0' % (V + 1))
    a('s_mul_i32 s%d, s%d, %d' % (sTmp, sH, 128 * 1280))
    a('s_add_u32 s%d, s12, s%d' % (WO, sTmp))
    a('s_addc_u32 s%d, s13, 0' % (WO + 1))
    a('s_mov_b32 s%d, s18' % WS)
    a('s_mov_b32 s%d, s19' % (WS + 1))
    a('s_mov_b32 s%d, s14' % OUT)
    a('s_mov_b32 s%d, s15' % (OUT + 1))
    for r_, sz in ((V, 0x100000), (WS, WS_BYTES), (OUT, 2560)):
        a('s_mov_b32 s%d, 0x%x' % (r_ + 2, sz))
        a('s_mov_b32 s%d, 0x20000' % (r_ + 3))
    a('s_cmp_lt_u32 s%d, %d' % (sIdx, 0 if dbg_nowo else 5))
    a('s_cselect_b32 s%d, %d, 0' % (WO + 2, 128 * 1280))
    a('s_mov_b32 s%d, 0x20000' % (WO + 3))
    a('s_mov_b32 s%d, 0x3e0293ee' % sCS)
    a('s_mov_b32 s%d, 0x01000100' % sSelLo)
    a('s_mov_b32 s%d, 0x03020302' % sSelHi)
    a('s_mov_b32 s%d, 0x10000' % sSpin)
    a('s_getreg_b32 s%d, hwreg(HW_REG_XCC_ID, 0, 4)' % sTX)
    a('v_and_b32 v%d, 1, v0' % vT)
    a('v_lshlrev_b32 v%d, 4, v%d' % (vT, vT))
    a('v_mov_b32 v%d, 0xffff' % (vT + 1))
    a('v_lshlrev_b32 v%d, v%d, v%d' % (vT, vT, vT + 1))
    a('v_bfe_u32 v%d, v0, 1, 2' % (vT + 1))
    for r in range(4):
        a('v_cmp_eq_u32 vcc, %d, v%d' % (r, vT + 1))
        a('v_cndmask_b32 v%d, 0, v%d, vcc' % (vMask + r, vT))
    a('v_mov_b32 v%d, 0x3ff' % vTag)
    a('v_and_b32 v%d, 31, v0' % vT)
    a('v_lshlrev_b32 v%d, 4, v%d' % (vT, vT))
    a('v_lshrrev_b32 v%d, 5, v%d' % (vT + 1, vLane))
    a('v_xor_b32 v%d, s%d, v%d' % (vT + 2, sB, vT + 1))
    a('v_lshl_add_u32 v%d, v%d, 9, v%d' % (vT + 2, vT + 2, vT))
    a('s_lshl_b32 s%d, s%d, 10' % (sTmp, sH))
    a('s_add_u32 s%d, s%d, %d' % (sTmp, sTmp, ML_OFF))
    a('v_add_u32 v%d, s%d, v%d' % (vMLl, sTmp, vT + 2))
    a('s_lshl3_add_u32 s%d, s%d, s%d' % (sTmp2, sIdx, sW))
    a('s_lshl4_add_u32 s%d, s%d, s%d' % (sTmp, sTmp2, sTmp))
    a('v_mov_b32 v%d, s%d' % (vMLs, sTmp))
    a('v_lshl_add_u32 v%d, v%d, 12, v%d' % (vT, vT + 1, vT))
    a('s_lshl4_add_u32 s%d, s%d, s%d' % (sTmp, sH, sIdx))
    a('s_lshl_b32 s%d, s%d, 9' % (sTmp, sTmp))
    a('s_add_u32 s%d, s%d, %d' % (sTmp, sTmp, QX_OFF))
    a('v_add_u32 v%d, s%d, v%d' % (vQs, sTmp, vT))
    a('s_lshl1_add_u32 s%d, s%d, s%d' % (sTmp, sH, sB))
    a('s_lshl_b32 s%d, s%d, 12' % (sTmp, sTmp))
    a('s_add_u32 s%d, s%d, %d' % (sTmp, sTmp, QX_OFF))
    a('v_lshl_add_u32 v%d, v%d, 4, s%d' % (vQg, vLane, sTmp))
    a('v_and_b32 v%d, 1, v%d' % (vT, vG))
    a('v_lshlrev_b32 v%d, 4, v%d' % (vT, vT))
    a('v_lshl_add_u32 v%d, v%d, 5, v%d' % (vT, vC, vT))
    a('s_mul_i32 s%d, s%d, %d' % (sTmp, sW, O_STRIDE))
    a('v_add_u32 v%d, s%d, v%d' % (vOw, sTmp, vT))
    a('v_and_b32 v%d, 7, v0' % (vT + 1))
    a('v_mul_u32_u24 v%d, %d, v%d' % (vT, O_STRIDE, vT + 1))
    a('v_lshl_add_u32 v%d, v%d, 4, v%d' % (vT, vG, vT))
    a('s_lshl_b32 s%d, s%d, 6' % (sTmp, sW))
    a('v_add_u32 v%d, s%d, v%d' % (vOr, sTmp, vT))
    a('v_mul_u32_u24 v%d, %d, v%d' % (vT, Y_STRIDE, vT + 1))
    a('v_lshrrev_b32 v%d, 3, v0' % (vT + 1))
    a('v_lshl_add_u32 v%d, v%d, 4, v%d' % (vYr, vT + 1, vT))
    a('s_mul_i32 s%d, s%d, %d' % (sTmp, sW, Y_STRIDE))
    a('v_lshl_add_u32 v%d, v%d, 4, s%d' % (vYw, vLane, sTmp))
    a('s_lshl3_add_u32 s%d, s%d, s%d' % (sTmp, sH, sW))
    a('s_lshl_b32 s%d, s%d, 9' % (sTmp, sTmp))
    a('s_add_u32 s%d, s%d, %d' % (sTmp, sTmp, OX_OFF))
    a('v_lshrrev_b32 v%d, 3, v%d' % (vT, vC))
    a('v_and_b32 v%d, 3, v0' % (vT + 1))
    a('v_lshl_add_u32 v%d, v%d, 2, v%d' % (vT, vT, vT + 1))
    a('v_lshl_add_u32 v%d, v%d, 2, v%d' % (vT, vT, vG))
    a('v_lshl_add_u32 v%d, v%d, 4, s%d' % (vOg, vT, sTmp))
    a('s_lshl_b32 s%d, s%d, 6' % (sTmp2, sIdx))
    a('s_add_u32 s%d, s%d, s%d' % (sTmp, sTmp, sTmp2))
    a('v_lshl_add_u32 v%d, v%d, 4, s%d' % (vOs, vG, sTmp))
    a('s_lshl3_add_u32 s%d, s%d, s%d' % (sTmp, sIdx, sW))
    a('s_lshl_b32 s%d, s%d, 5' % (sTmp, sTmp))
    a('s_add_u32 s%d, s%d, s%d' % (sTmp, sTmp, sH))
    a('s_lshl_b32 s%d, s%d, 7' % (sTmp, sTmp))
    a('s_add_u32 s%d, s%d, %d' % (sTmp, sTmp, Y_OFF))
    a('v_lshrrev_b32 v%d, 3, v%d' % (vT, vLane))
    a('v_lshl_add_u32 v%d, v%d, 4, s%d' % (vYg, vT, sTmp))
    a('v_lshrrev_b32 v%d, 4, v0' % vT)
    a('v_mul_u32_u24 v%d, 5120, v%d' % (vWO, vT))
    a('v_lshl_add_u32 v%d, v%d, 4, v%d' % (vWO, vC, vWO))
    a('s_lshl_b32 s%d, s%d, 8' % (sTmp, sIdx))
    a('v_add_u32 v%d, s%d, v%d' % (vWO, sTmp, vWO))
    a('s_lshr_b32 s%d, s%d, 3' % (sJJ, sH))
    a('s_mul_i32 s%d, s%d, 3' % (sJJ, sJJ))
    a('s_add_u32 s%d, s%d, s%d' % (sJJ, sJJ, sIdx))
    a('s_sub_u32 s%d, s%d, 5' % (sJJ, sJJ))
    a('s_and_b32 s%d, s%d, 7' % (sTmp, sH))
    a('s_mul_i32 s%d, s%d, 10' % (sTmp, sTmp))
    a('s_add_u32 s%d, s%d, s%d' % (sTmp, sTmp, sJJ))
    a('s_lshr_b32 s4, s%d, 1' % sTmp)
    a('s_lshl_b32 s4, s4, 12')
    a('s_and_b32 s5, s%d, 1' % sTmp)
    a('s_lshl_b32 s5, s5, 6')
    a('s_add_u32 s4, s4, s5')
    a('s_add_u32 s4, s4, %d' % Y_OFF)
    a('v_lshrrev_b32 v%d, 2, v%d' % (vT, vLane))
    a('v_and_b32 v%d, 3, v0' % (vT + 1))
    a('v_lshl_add_u32 v%d, v%d, 3, v%d' % (vT, vT, vT + 1))
    a('v_lshl_add_u32 v%d, v%d, 4, s4' % (vCo, vT))
    a('s_lshr_b32 s4, s%d, 4' % sTmp)
    a('s_lshl_b32 s4, s4, 7')
    a('s_and_b32 s5, s%d, 3' % sTmp)
    a('s_lshl_b32 s5, s5, 5')
    a('s_add_u32 s4, s4, s5')
    a('s_bfe_u32 s5, s%d, 0x10002' % sTmp)
    a('s_lshl2_add_u32 s4, s5, s4')
    a('s_bfe_u32 s5, s%d, 0x10003' % sTmp)
    a('s_mul_i32 s5, s5, 640')
    a('s_add_u32 s4, s4, s5')
    a('v_lshlrev_b32 v%d, 3, v%d' % (vT + 1, vT + 1))
    a('v_bfe_u32 v%d, v0, 2, 1' % vT)
    a('v_lshl_add_u32 v%d, v%d, 1, v%d' % (vT + 1, vT, vT + 1))
    a('v_bfe_u32 v%d, v0, 3, 1' % vT)
    a('v_add3_u32 v%d, s4, v%d, v%d' % (vCst, vT, vT + 1))
    a('v_lshlrev_b32 v%d, 1, v%d' % (vCst, vCst))
    a('s_waitcnt lgkmcnt(0)')
    a('s_mul_i32 s%d, s%d, 0x9e3779b1' % (sT, sT))
    a('s_add_u32 s%d, s%d, 0x7f4a7c15' % (sT, sT))
    a('s_and_b32 s%d, s%d, 0x3ff' % (sT0, sT))
    a('s_bfe_u32 s%d, s%d, 0xa000a' % (sT1, sT))
    a('s_bfe_u32 s%d, s%d, 0xa0014' % (sT2, sT))
    a('s_lshl4_add_u32 s%d, s%d, s%d' % (sTX, sT, sTX))
    a('s_cmp_eq_u32 s%d, %d' % (sW, 9 if dbg_noagent else 0))
    a('s_cbranch_scc1 L_agent2')
    a.vm = [(('kv', n), True) for n in range(F0)]
    for n in range(F0, nm):
        a.wait_vm(('kv', n - F))
        kv_load(n)
    a('s_branch L_merge')

    a.label('L_agent2')
    a.vm = agent_vm
    cur_off[0] = None
    a.wait_vm('x2')

    def xdup(t):
        a('v_perm_b32 v%d, v%d, v%d, s%d' % (vT + (t & 1), vX + t // 2, vX + t // 2, sSelHi if t & 1 else sSelLo))

    def q_step(t):
        if t == 0:
            xdup(0)
        for r in range(4):
            a('v_and_b32 v%d, v%d, v%d' % (vA + r, vT + (t & 1), vMask + r))
        if t < 19:
            xdup(t + 1)
        a.wait_vm(('wq', t))
        a('v_mfma_f32_16x16x32_bf16 %s, %s, %s, %s' % (vr(vAcc), vr(vA), vr(vWb + 4 * t), vr(vAcc) if t else '0'))
        if t == 19:
            put_tag(vAcc)
            a('buffer_store_dwordx4 %s, v%d, %s, 0 offen sc1' % (vr(vAcc), vQs, srd(WS)), tag='qst')

    tq = 0
    for ch in rest:
        while sum(1 for _, ld in a.vm if ld) >= Fag:
            oldest = [t for t, ld in a.vm if ld][0]
            if oldest[0] == 'wq':
                assert oldest[1] == tq
                q_step(tq)
                tq += 1
            else:
                a.wait_vm(oldest)
        agent_issue(ch)
    assert tq == 20
    assert [t for t, ld in a.vm if ld][-F:] == [('kv', n) for n in range(nm - F, nm)]

    a.label('L_merge')
    a.vm = [(('kv', n), True) for n in range(nm - max(F, Fag), nm)]
    cur_off[0] = None

    vPoll = vX + 4
    vS, vTT = vX, vX + 8
    pend = []
    bank_of = [0, 2, 1, 3]
    state = {'polled': False, 'scaled': False, 'q': False, 'qg': False}

    def qgather():
        for j in range(4):
            a('buffer_load_dwordx4 %s, v%d, %s, 0 offen offset:%d sc1' % (vr(vWb + 4 * j), vQg, srd(WS), 1024 * j),
              tag=('qg', j))

    def q_code():
        a.comment('q of this (batch, head): sum of the eight row-block products')
        a.label('L_q_check')
        untag(vWb, 4, vT)
        if not (dbg_nogather or dbg_noagent):
            a('s_cbranch_vccnz L_q_retry')
        a.label('L_q_ok')
        swap_reduce('v_add_f32', range(vWb, vWb + 4), range(vWb + 4, vWb + 8), 32)
        a('v_cvt_pk_bf16_f32 v%d, v%d, v%d' % (vQ, vWb, vWb + 1))
        a('v_cvt_pk_bf16_f32 v%d, v%d, v%d' % (vQ + 1, vWb + 2, vWb + 3))
        a('v_mov_b32 v%d, v%d' % (vQ + 2, vQ))
        a('v_mov_b32 v%d, v%d' % (vQ + 3, vQ + 1))
        a('v_permlane16_swap_b32 v%d, v%d' % (vQ, vQ + 2))
        a('v_permlane16_swap_b32 v%d, v%d' % (vQ + 1, vQ + 3))
        state['q'] = True
        stamp(2)

    def score(n):
        rb = vRing + 4 * (n % NS)
        s = vS + (n & 7)
        for k in range(4):
            a('v_dot2_f32_bf16 v%d, v%d, v%d, %s' % (s, rb + k, vQ + k, 'v%d' % s if k else '0'))
            if pend and k in (0, 2):
                pend.pop(0)()
        if n % 4 == 3:
            assert not pend
            s0 = vS + (n & 4)
            u = vU + n // 4
            pend.extend([
                lambda: dpp('v_add_f32', vTT, s0, s0, 'row_ror:8', 0x3),
                lambda: dpp('v_add_f32', vTT, s0 + 1, s0 + 1, 'row_ror:8', 0xc),
                lambda: dpp('v_add_f32', vTT + 1, s0 + 2, s0 + 2, 'row_ror:8', 0x3),
                lambda: dpp('v_add_f32', vTT + 1, s0 + 3, s0 + 3, 'row_ror:8', 0xc),
                lambda: dpp('v_add_f32', u, vTT, vTT, 'row_shl:4', 0x5),
                lambda: dpp('v_add_f32', u, vTT + 1, vTT + 1, 'row_shr:4', 0xa),
                lambda: dpp('v_add_f32', u, u, u, 'quad_perm:[1,0,3,2]'),
                lambda: dpp('v_add_f32', u, u, u, 'quad_perm:[2,3,0,1]'),
            ])

    def softmax():
        while pend:
            pend.pop(0)()
        stamp(3)
        a('v_max3_f32 v%d, v%d, v%d, v%d' % (vM, vU, vU + 1, vU + 2))
        a('v_max3_f32 v%d, v%d, v%d, v%d' % (vM, vM, vU + 3, vU + 4))
        a('v_max3_f32 v%d, v%d, v%d, v%d' % (vM, vM, vU + 5, vU + 6))
        a('v_max_f32 v%d, v%d, v%d' % (vM, vM, vU + 7))
        dpp('v_max_f32', vM, vM, vM, 'row_ror:4')
        dpp('v_max_f32', vM, vM, vM, 'row_ror:8')
        swap_reduce('v_max_f32', [vM], [vT], 16)
        swap_reduce('v_max_f32', [vM], [vT], 32)
        a('v_mul_f32 v%d, s%d, v%d' % (vM, sCS, vM))
        for k in range(8):
            a('v_fma_f32 v%d, v%d, s%d, -v%d' % (vU + k, vU + k, sCS, vM))
        for k in range(8):
            a('v_exp_f32 v%d, v%d' % (vU + k, vU + k))
        vML = vX
        a('v_add_f32 v%d, v%d, v%d' % (vML + 2, vU, vU + 1))
        for k in range(2, 8):
            a('v_add_f32 v%d, v%d, v%d' % (vML + 2, vML + 2, vU + k))
        for k in range(8):
            a('v_cvt_pk_bf16_f32 v%d, v%d, v%d' % (vU + k, vU + k, vU + k))
        dpp('v_add_f32', vML + 2, vML + 2, vML + 2, 'row_ror:4')
        a('v_mov_b32 v%d, v%d' % (vML, vM))
        a('v_mov_b32 v%d, s%d' % (vML + 1, sT))
        dpp('v_add_f32', vML + 2, vML + 2, vML + 2, 'row_ror:8')
        a('v_mov_b32 v%d, s%d' % (vML + 3, sTX))
        swap_reduce('v_add_f32', [vML + 2], [vT], 16)
        swap_reduce('v_add_f32', [vML + 2], [vT], 32)
        a('s_mov_b64 exec, 1')
        a('buffer_store_dwordx4 %s, v%d, %s, 0 offen sc1' % (vr(vML), vMLs, srd(WS)), tag='mlst')
        a('s_mov_b64 exec, -1')
        build_a(0)

    def build_a(i):
        for r in range(4):
            a('v_and_b32_dpp v%d, v%d, v%d row_newbcast:%d row_mask:0xf bank_mask:0xf' %
              (vA + 4 * (i & 1) + r, vU + i // 4, vMask + r, 4 * bank_of[i % 4]))

    def scale_code():
        a.comment('combine the 32 wave statistics of this (batch, head); compare the dies of the head group')
        a.label('L_ml_check')
        a('v_xor_b32 v%d, s%d, v%d' % (vT, sT, vPoll + 1))
        a('v_xor_b32 v%d, s%d, v%d' % (vT + 1, sTX, vPoll + 3))
        a('v_and_or_b32 v%d, v%d, -16, v%d' % (vT, vT + 1, vT))
        a('v_cmp_ne_u32 vcc, 0, v%d' % vT)
        a('s_cbranch_vccnz L_ml_retry')
        a.label('L_ml_ok')
        a('v_cmp_ne_u32 s[%d:%d], 0, v%d' % (sFast, sFast + 1, vT + 1))
        vMM = vT + 1
        dpp('v_max_f32', vMM, vPoll, vPoll, 'quad_perm:[1,0,3,2]')
        dpp('v_max_f32', vMM, vMM, vMM, 'quad_perm:[2,3,0,1]')
        dpp('v_max_f32', vMM, vMM, vMM, 'row_ror:4')
        dpp('v_max_f32', vMM, vMM, vMM, 'row_ror:8')
        swap_reduce('v_max_f32', [vMM], [vT], 16)
        a('v_sub_f32 v%d, v%d, v%d' % (vPoll, vPoll, vMM))
        a('v_sub_f32 v%d, v%d, v%d' % (vScale, vM, vMM))
        a('v_exp_f32 v%d, v%d' % (vPoll, vPoll))
        a('v_exp_f32 v%d, v%d' % (vScale, vScale))
        a('v_mul_f32 v%d, v%d, v%d' % (vPoll, vPoll, vPoll + 2))
        dpp('v_add_f32', vPoll, vPoll, vPoll, 'quad_perm:[1,0,3,2]')
        dpp('v_add_f32', vPoll, vPoll, vPoll, 'quad_perm:[2,3,0,1]')
        dpp('v_add_f32', vPoll, vPoll, vPoll, 'row_ror:4')
        dpp('v_add_f32', vPoll, vPoll, vPoll, 'row_ror:8')
        swap_reduce('v_add_f32', [vPoll], [vT], 16)
        a('v_rcp_f32 v%d, v%d' % (vPoll, vPoll))
        a('v_mul_f32 v%d, v%d, v%d' % (vScale, vScale, vPoll))
        state['scaled'] = True

    def process(n):
        if n < 32:
            score(n)
            if n == 31:
                softmax()
            return
        i = n - 32
        if state['polled'] and not state['scaled'] and 'poll' not in [t for t, _ in a.vm]:
            scale_code()
        a('v_mfma_f32_16x16x32_bf16 %s, %s, %s, %s' %
          (vr(vAcc), vr(vA + 4 * (i & 1)), vr(vRing + 4 * (n % NS)), vr(vAcc) if i else '0'))
        if i < 31:
            build_a(i + 1)

    def extras(n):
        if n == gather_at:
            if not dbg_nogather:
                qgather()
            state['qg'] = True
        if n == poll_at:
            assert done > 32
            if pre_ox:
                a('buffer_load_dword v%d, v%d, %s, 0 offen sc1' % (vWQ, vOg, srd(WS)), tag='preox')
            a('buffer_load_dwordx4 %s, v%d, %s, 0 offen sc1' % (vr(vPoll), vMLl, srd(WS)), tag='poll')
            state['polled'] = True
        for t in range(4):
            if wo_land is None and wo_at[t] == n:
                wo_load(t)

    def wo_load(t):
        assert state['q']
        a('buffer_load_dwordx4 %s, v%d, %s, 0 offen offset:%d%s' %
          (vr(vWb + 4 * t), vWO, srd(WO), 1280 * t, wflag), tag=('wo', t))

    assert gather_at >= nm
    issued, done, landed = nm, 0, nm - F
    while done < 64:
        if landed < 64:
            assert landed < issued
            a.wait_vm(('kv', landed))
            landed += 1
        while issued < 64 and issued - landed < (Fend if issued >= end_at else F):
            assert issued - done < NS
            extras(issued)
            kv_load(issued)
            issued += 1
            if issued == 64:
                extras(64)
        for t in range(4):
            if wo_land is not None and wo_land[t] == landed and ('wo', t) not in a.issued:
                wo_load(t)
        if not state['q']:
            if state['qg'] and ('qg', 3) not in [t for t, _ in a.vm]:
                q_code()
            continue
        for _ in range(catch):
            if done < landed:
                process(done)
                done += 1
    assert state['scaled']
    stamp(4)

    a('s_mov_b32 s4, 0x00010001')
    a('s_mov_b32 s5, 0x00010001')
    a('s_mov_b32 s6, 0x01010101')
    a('s_mov_b32 s7, 0x01010101')
    a('s_mov_b32 exec_hi, 0')
    for r in range(4):
        a('v_mul_f32 v%d, v%d, v%d' % (vAcc + r, vScale, vAcc + r))
    a('ds_write_b128 v%d, %s offset:%d' % (vOw, vr(vAcc), LDS_O))
    a('s_mov_b64 exec, -1')
    a('s_cmp_eq_u64 s[%d:%d], 0' % (sFast, sFast + 1))
    a('s_waitcnt lgkmcnt(0)')
    a('s_barrier')
    vO = vU
    a('ds_read_b128 %s, v%d offset:%d' % (vr(vO), vOr, LDS_O))
    a('s_waitcnt lgkmcnt(0)')
    for ctrl in ('quad_perm:[1,0,3,2]', 'quad_perm:[2,3,0,1]', 'row_half_mirror'):
        for t in range(4):
            dpp('v_add_f32', vO + t, vO + t, vO + t, ctrl)
    put_tag(vO)
    a('s_mov_b64 exec, s[4:5]')
    if fast:
        a('s_cbranch_scc0 L_o_far')
        a('buffer_store_dwordx4 %s, v%d, %s, 0 offen' % (vr(vO), vOs, srd(WS)))
        a.label('L_o_sent')
    else:
        a('buffer_store_dwordx4 %s, v%d, %s, 0 offen sc1' % (vr(vO), vOs, srd(WS)))
    a('s_mov_b64 exec, -1')
    a('s_cmp_ge_u32 s%d, 5' % sIdx)
    a('s_cbranch_scc1 L_not_proj')
    vP = vRing
    a.label('L_o_poll')
    a('buffer_load_dwordx4 %s, v%d, %s, 0 offen sc1' % (vr(vP), vOg, srd(WS)))
    a('s_waitcnt vmcnt(0)')
    a.vm = []
    untag(vP, 1, vT)
    a('s_cbranch_vccnz L_o_retry')
    a.label('L_o_ok')
    for ctrl in ('quad_perm:[1,0,3,2]', 'quad_perm:[2,3,0,1]'):
        for t in range(4):
            dpp('v_add_f32', vP + t, vP + t, vP + t, ctrl)
    for t in range(4):
        a('v_cvt_pk_bf16_f32 v%d, v%d, v%d' % (vP + t, vP + t, vP + t))
    vA2 = vRing + 4
    for t in range(4):
        for r in range(4):
            a('v_and_b32 v%d, v%d, v%d' % (vA2 + 4 * t + r, vP + t, vMask + r))
        if t:
            a('v_mfma_f32_16x16x32_bf16 %s, %s, %s, %s' %
              (vr(vAcc), vr(vA2 + 4 * t - 4), vr(vWb + 4 * t - 4), vr(vAcc) if t > 1 else '0'))
    a('v_mfma_f32_16x16x32_bf16 %s, %s, %s, %s' % (vr(vAcc), vr(vA2 + 12), vr(vWb + 12), vr(vAcc)))
    a('ds_write_b128 v%d, %s offset:%d' % (vYw, vr(vAcc), LDS_Y))
    a('s_waitcnt lgkmcnt(0)')
    a('s_barrier')
    a('ds_read_b128 %s, v%d offset:%d' % (vr(vP), vYr, LDS_Y))
    a('s_waitcnt lgkmcnt(0)')
    for ctrl in ('quad_perm:[1,0,3,2]', 'quad_perm:[2,3,0,1]', 'row_half_mirror'):
        for t in range(4):
            dpp('v_add_f32', vP + t, vP + t, vP + t, ctrl)
    put_tag(vP)
    a('s_mov_b64 exec, s[6:7]')
    a('buffer_store_dwordx4 %s, v%d, %s, 0 offen sc1' % (vr(vP), vYg, srd(WS)))
    if stamps:
        a('s_mov_b64 exec, -1')
        a('s_branch L_fin')
    else:
        a('s_endpgm')
    a.label('L_o_retry')
    a('s_sub_u32 s%d, s%d, 1' % (sSpin, sSpin))
    a('s_cbranch_scc0 L_o_poll')
    a('s_nop 1')
    a('s_branch L_o_ok')
    if fast:
        a.label('L_o_far')
        a('buffer_store_dwordx4 %s, v%d, %s, 0 offen sc1' % (vr(vO), vOs, srd(WS)))
        a('s_branch L_o_sent')

    a.label('L_not_proj')
    a('s_cmp_lg_u32 s%d, 0' % sW)
    a('s_cbranch_scc1 L_fin')
    a('s_cmp_ge_u32 s%d, 10' % sJJ)
    a('s_cbranch_scc1 L_not_cons')
    if warm:
        a('s_mov_b64 vcc, -1')
        a('s_branch L_cons_ok')
    a.label('L_cons_poll')
    for n in range(2):
        a('buffer_load_dwordx4 %s, v%d, %s, 0 offen offset:%d sc1' % (vr(vP + 4 * n), vCo, srd(WS), 2048 * n))
    untag(vP, 2, vT, waits=True)
    a.vm = []
    a('s_cbranch_vccnz L_cons_retry')
    a.label('L_cons_ok')
    dpp('v_add_f32', vT, vP, vP, 'row_ror:8', 0x3)
    dpp('v_add_f32', vT + 1, vP + 2, vP + 2, 'row_ror:8', 0x3)
    dpp('v_add_f32', vT, vP + 1, vP + 1, 'row_ror:8', 0xc)
    dpp('v_add_f32', vT + 1, vP + 3, vP + 3, 'row_ror:8', 0xc)
    dpp('v_add_f32', vP, vT, vT, 'row_shl:4', 0x5)
    dpp('v_add_f32', vP, vT + 1, vT + 1, 'row_shr:4', 0xa)
    swap_reduce('v_add_f32', [vP], [vT], 16)
    swap_reduce('v_add_f32', [vP], [vT], 32)
    a('v_cvt_pk_bf16_f32 v%d, v%d, v%d' % (vP, vP, vP))
    if warm:
        a('s_cbranch_vccnz L_cons_poll')
    a('s_mov_b64 exec, 0xffff')
    a('buffer_store_short v%d, v%d, %s, 0 offen%s' % (vP, vCst, srd(OUT), outflag))
    if stamps:
        a('s_mov_b64 exec, -1')
        a('s_branch L_fin')
    else:
        a('s_endpgm')
    a.label('L_cons_retry')
    a('s_sub_u32 s%d, s%d, 1' % (sSpin, sSpin))
    a('s_cbranch_scc0 L_cons_poll')
    a('s_mov_b64 vcc, 0')
    a('s_branch L_cons_ok')

    a.label('L_ml_retry')
    a('s_sub_u32 s%d, s%d, 1' % (sSpin, sSpin))
    a('s_cbranch_scc1 L_ml_ok')
    a('buffer_load_dwordx4 %s, v%d, %s, 0 offen sc1' % (vr(vPoll), vMLl, srd(WS)))
    a('s_waitcnt vmcnt(0)')
    a('s_branch L_ml_check')

    a.label('L_q_retry')
    a('s_sub_u32 s%d, s%d, 1' % (sSpin, sSpin))
    a('s_cbranch_scc1 L_q_ok')
    qgather()
    a('s_waitcnt vmcnt(0)')
    a('s_branch L_q_check')

    a.label('L_not_cons')
    a('s_lshl3_add_u32 s%d, s%d, s%d' % (sTmp, sH, sIdx))
    a('s_cmp_lg_u32 s%d, 0xff' % sTmp)
    a('s_cbranch_scc1 L_fin')
    a('v_lshlrev_b32 v%d, 4, v%d' % (vT + 1, vLane))
    a.label('L_ep_poll')
    a('s_mov_b32 s4, %d' % ML_OFF)
    for n in range(32):
        a('buffer_load_dword v%d, v%d, %s, s4 offen offset:%d sc1' % (vP + n, vT + 1, srd(WS), 1024 * (n % 4) + 4))
        if n % 4 == 3 and n < 31:
            a('s_add_u32 s4, s4, 0x1000')
    a('s_waitcnt vmcnt(0)')
    a('v_xor_b32 v%d, s%d, v%d' % (vT, sT, vP))
    for n in range(1, 32):
        a('v_bitop3_b32 v%d, v%d, s%d, v%d bitop3:0xf6' % (vT, vT, sT, vP + n))
    a('v_cmp_ne_u32 vcc, 0, v%d' % vT)
    a('s_cbranch_vccz L_ep_ok')
    a('s_sub_u32 s%d, s%d, 1' % (sSpin, sSpin))
    a('s_cbranch_scc0 L_ep_poll')
    a.label('L_ep_ok')
    a('v_mov_b32 v%d, s%d' % (vT, sT))
    a('v_mov_b32 v%d, 0' % (vT + 1))
    a('s_mov_b64 exec, 1')
    a('buffer_store_dword v%d, v%d, %s, 0 offen sc1' % (vT, vT + 1, srd(WS)))
    a('s_mov_b64 exec, -1')
    a.label('L_fin')
    if stamps:
        stamp(5)
        a('s_waitcnt vmcnt(0)')
        stamp(6)
        a('s_getreg_b32 s%d, hwreg(HW_REG_XCC_ID)' % (sStamp + 14))
        a('s_mov_b32 s%d, s%d' % (sStamp + 15, sSpin))
        a('s_waitcnt lgkmcnt(0)')
        if dbgout:
            a('s_cmp_lg_u32 s%d, 0' % sW)
            a('s_cbranch_scc1 L_end')
            a('s_mov_b32 s24, s16')
            a('s_mov_b32 s25, s17')
            a('s_mov_b32 s26, 256')
            a('v_mov_b32 v%d, 0' % vT)
            for k in range(7):
                a('v_writelane_b32 v%d, s%d, %d' % (vT, sStamp + 2 * k, k))
                a('s_not_b32 s4, s%d' % (sStamp + 2 * k))
                a('v_writelane_b32 v%d, s4, %d' % (vT, 8 + k))
            a('v_lshlrev_b32 v%d, 2, v%d' % (vT + 1, vLane))
            a('s_mov_b64 exec, 0xffff')
            a('buffer_atomic_umax v%d, v%d, s[24:27], 0 offen' % (vT, vT + 1))
            a('s_endpgm')
        a('v_mov_b32 v%d, 0' % vT)
        for k in range(16):
            a('v_writelane_b32 v%d, s%d, %d' % (vT, sStamp + k, k))
        a('s_lshl3_add_u32 s%d, s2, s%d' % (sTmp, sW))
        a('s_lshl_b32 s%d, s%d, 6' % (sTmp, sTmp))
        a('s_add_u32 s%d, s%d, 0x%x' % (sTmp, sTmp, STAMP_OFF))
        a('v_lshlrev_b32 v%d, 2, v%d' % (vT + 1, vLane))
        a('s_mov_b64 exec, 0xffff')
        a('buffer_store_dword v%d, v%d, %s, s%d offen' % (vT, vT + 1, srd(WS), sTmp))
    a.label('L_end')
    a('s_endpgm')

    out = HEADER
    out += '; @launch grid=(256,1,1) block=(512,1,1) lds=16384\n'
    out += '.amdgcn_target "amdgcn-amd-amdhsa--gfx950"\n.text\n.globl %s_kernel\n.p2align 8\n' % NAME
    out += '.type %s_kernel,@function\n%s_kernel:\n' % (NAME, NAME)
    out += a.text()
    out += '''.section .rodata,"a"
.p2align 6
.amdhsa_kernel %s_kernel
  .amdhsa_next_free_vgpr 256
  .amdhsa_next_free_sgpr 96
  .amdhsa_accum_offset 256
  .amdhsa_group_segment_fixed_size 0
  .amdhsa_kernarg_size 64
  .amdhsa_user_sgpr_count 2
  .amdhsa_user_sgpr_kernarg_segment_ptr 1
  .amdhsa_system_sgpr_workgroup_id_x 1
  .amdhsa_float_denorm_mode_32 3
.end_amdhsa_kernel
''' % NAME
    return out


if __name__ == '__main__':
    kw = {}
    for arg in sys.argv[2:]:
        k, v = arg.split('=', 1)
        kw[k] = eval(v)
    text = gen(**kw)
    open(sys.argv[1], 'w').write(text)
```

```python
import sys
from asmlib import Asm
from gen2 import HEADER, NAME

ML_OFF = 4096
QX_OFF = 64 << 10
OX_OFF = 384 << 10
Y_OFF = 512 << 10
STAMP_OFF = 1 << 22
LDS_O, LDS_Y = 0, 4352
O_STRIDE = 544
Y_STRIDE = 1088


def gen(F=4, Fend=6, end_at=52, NS=28, order='iiwwwisisi', wgmap='A', kvflag=' nt', wflag=' nt',
        nm=12, Fag=6, gather_at=14, catch=3, poll_at=50, wo_at=(64, 64, 64, 64), stamps=False, fast=True,
        pre_code=True, pre_ox=True, warm=True, outflag='', F0=None, wo_land=None, dbg_noq=False, dbg_nowo=False,
        dbgout=False, dbglimit=None, dbg_nogather=False, dbg_noagent=False, agent_plan=None):
    a = Asm()
    F0 = F0 or F
    dbg_nogather |= dbg_noq
    dbg_noagent |= dbg_noq
    WS_BYTES = (STAMP_OFF + 256 * 8 * 64) if stamps else (1 << 20)
    sW, sH, sB, sS = 20, 21, 22, 23
    K, V, WQ, WO, X, WS, OUT = 24, 28, 32, 36, 40, 44, 48
    sOff, sT, sT0, sT1, sT2, sCS, sSelLo, sSelHi, sSpin = 52, 53, 54, 55, 56, 57, 58, 59, 60
    sTmp, sBH, sIdx, sKoff, sTmp2 = 61, 62, 63, 64, 65
    sStamp = 66
    sTX, sJJ, sFast = 82, 83, 84
    srd = lambda n: 's[%d:%d]' % (n, n + 3)
    vr = lambda n, k=4: 'v[%d:%d]' % (n, n + k - 1)
    vLane, vKV, vWQ, vMask, vQ, vAcc, vU, vA, vX = 1, 2, 3, 4, 8, 12, 16, 24, 32
    vWO, vC, vG, vT = 42, 43, 44, 45
    vQs, vQg, vOw, vOr, vOs, vOg, vYg, vMLs, vMLl, vCo, vCst, vM, vScale, vTag, vYw, vYr = range(48, 64)
    vWb, vRing = 64, 144
    assert vRing + 4 * NS <= 256
    tg = [sT0, sT1, sT0, sT2]

    def stamp(k):
        if stamps:
            a('s_memrealtime s[%d:%d]' % (sStamp + 2 * k, sStamp + 2 * k + 1))

    pos = {'s': [], 'w': [], 'i': []}
    for p, ch in enumerate(order):
        pos[ch].append(p + 10)
    spread = lambda val, ps: sum(((val >> k) & 1) << p for k, p in enumerate(ps))
    cur_off = [None]

    def soff(v):
        if v == 0:
            return '0'
        if cur_off[0] != v:
            a('s_mov_b32 s%d, 0x%x' % (sOff, v))
            cur_off[0] = v
        return 's%d' % sOff

    def kv_load(n):
        off = spread(n % 32, pos['i'])
        s = soff(off - off % 4096)
        a('buffer_load_dwordx4 %s, v%d, %s, %s offen offset:%d%s' %
          (vr(vRing + 4 * (n % NS)), vKV, srd(K if n < 32 else V), s, off % 4096, kvflag), tag=('kv', n))

    def dpp(op, d, s0, s1, ctrl, bank=0xf):
        a('%s_dpp v%d, v%d, v%d %s row_mask:0xf bank_mask:0x%x' % (op, d, s0, s1, ctrl, bank))

    def swap_reduce(op, regs, tmps, which):
        for v, t in zip(regs, tmps):
            a('v_mov_b32 v%d, v%d' % (t, v))
        for v, t in zip(regs, tmps):
            a('v_permlane%d_swap_b32 v%d, v%d' % (which, v, t))
        for v, t in zip(regs, tmps):
            a('%s v%d, v%d, v%d' % (op, v, v, t))

    def untag(base, n, acc, waits=None):
        for j in range(n):
            if waits:
                a('s_waitcnt vmcnt(%d)' % (n - 1 - j))
            for k in range(4):
                a('v_xor_b32 v%d, s%d, v%d' % (base + 4 * j + k, tg[k], base + 4 * j + k))
            if j == 0:
                a('v_or3_b32 v%d, v%d, v%d, v%d' % (acc, base, base + 1, base + 2))
                if n == 1:
                    a('v_bitop3_b32 v%d, v%d, v%d, v%d bitop3:0xa8' % (acc, acc, base + 3, vTag))
                else:
                    a('v_or_b32 v%d, v%d, v%d' % (acc, acc, base + 3))
            else:
                a('v_or3_b32 v%d, v%d, v%d, v%d' % (acc, acc, base + 4 * j, base + 4 * j + 1))
                a('v_or3_b32 v%d, v%d, v%d, v%d' % (acc, acc, base + 4 * j + 2, base + 4 * j + 3))
                for k in (0, 2):
                    a('v_pk_add_f32 %s, %s, %s' % (vr(base + k, 2), vr(base + k, 2), vr(base + 4 * j + k, 2)))
        if n > 1:
            a('v_and_b32 v%d, v%d, v%d' % (acc, vTag, acc))
        a('v_cmp_ne_u32 vcc, 0, v%d' % acc)

    def put_tag(base):
        for k in range(4):
            a('v_bfi_b32 v%d, v%d, s%d, v%d' % (base + k, vTag, tg[k], base + k))

    def spread_s(dst, src, ps, tmp):
        k = 0
        while k < len(ps):
            n = 1
            while k + n < len(ps) and ps[k + n] == ps[k] + n:
                n += 1
            a('s_bfe_u32 s%d, s%d, 0x%x' % (tmp, src, (n << 16) | k))
            a('s_lshl_b32 s%d, s%d, %d' % (tmp, tmp, ps[k]))
            a('s_add_u32 s%d, s%d, s%d' % (dst, dst, tmp))
            k += n

    a('s_cmp_ge_u32 s2, 0x100')
    a('s_cbranch_scc1 L_end')
    a('s_load_dwordx16 s[4:19], s[0:1], 0')
    stamp(0)
    a('v_lshrrev_b32 v%d, 6, v0' % vT)
    a('v_and_b32 v%d, 63, v0' % vLane)
    a('v_readfirstlane_b32 s%d, v%d' % (sW, vT))
    if wgmap == 'A':
        a('s_and_b32 s%d, s2, 31' % sH)
        a('s_bfe_u32 s%d, s2, 0x10005' % sB)
        a('s_lshr_b32 s%d, s2, 6' % sS)
    elif wgmap == 'D':
        a('s_and_b32 s%d, s2, 7' % sH)
        a('s_lshr_b32 s%d, s2, 6' % sTmp)
        a('s_lshl3_add_u32 s%d, s%d, s%d' % (sH, sTmp, sH))
        a('s_bfe_u32 s%d, s2, 0x10005' % sB)
        a('s_bfe_u32 s%d, s2, 0x20003' % sS)
    a('s_lshl_b32 s%d, s%d, 5' % (sBH, sB))
    a('s_add_u32 s%d, s%d, s%d' % (sBH, sBH, sH))
    a('s_lshl2_add_u32 s%d, s%d, s%d' % (sIdx, sB, sS))
    a('s_lshl_b32 s%d, s%d, 22' % (sKoff, sBH))
    a('s_add_u32 s%d, s%d, 0x300000' % (sKoff, sKoff))
    a('s_mov_b32 s%d, 0' % sTmp)
    spread_s(sTmp, sS, pos['s'], sTmp2)
    spread_s(sTmp, sW, pos['w'], sTmp2)
    a('v_lshl_add_u32 v%d, v%d, 4, s%d' % (vKV, vLane, sTmp))
    a('v_and_b32 v%d, 15, v0' % vC)
    a('v_bfe_u32 v%d, v0, 4, 2' % vG)
    a('s_mov_b32 s%d, 0x100000' % (K + 2))
    a('s_mov_b32 s%d, 0x20000' % (K + 3))
    a('s_cmp_eq_u32 s%d, %d' % (sW, 9 if dbg_noagent else 0))
    a('s_cbranch_scc1 L_agent')
    if pre_code:
        a.comment('pull the rest of the code into L2')
        a('s_sub_u32 s%d, s%d, 1' % (sTmp, sW))
        a('s_cmp_gt_u32 s%d, 1' % sTmp)
        a('s_cbranch_scc1 L_nopre')
        a('s_getpc_b64 s[%d:%d]' % (X, X + 1))
        a.label('L_pc')
        a('v_subrev_u32 v%d, 64, v0' % vT)
        a('v_lshlrev_b32 v%d, 7, v%d' % (vT, vT))
        a('v_min_u32 v%d, L_end-L_pc, v%d' % (vT, vT))
        a('global_load_dword v%d, v%d, s[%d:%d]' % (vWQ, vT, X, X + 1))
        a.label('L_nopre')
        a.vm = []
    a('s_waitcnt lgkmcnt(0)')
    a('s_add_u32 s%d, s6, s%d' % (K, sKoff))
    a('s_addc_u32 s%d, s7, 0' % (K + 1))
    a('s_load_dword s%d, s[18:19], 0' % sT)
    for n in range(F0):
        kv_load(n)
    stamp(1)
    a('s_branch L_setup')

    a.label('L_agent')
    a.vm = []
    cur_off[0] = None
    a('v_mul_u32_u24 v%d, 0x%x, v%d' % (vWQ, 20 * 8192, vG))
    a('v_lshl_add_u32 v%d, v%d, 4, v%d' % (vWQ, vC, vWQ))
    a('v_lshrrev_b32 v%d, 3, v%d' % (vT, vC))
    a('v_mul_u32_u24 v%d, 1280, v%d' % (vT, vT))
    a('v_mad_u32_u24 v%d, v%d, 40, v%d' % (vT, vG, vT))
    a('s_mul_i32 s%d, s%d, 160' % (sTmp, sIdx))
    a('v_add_u32 v%d, s%d, v%d' % (vT, sTmp, vT))
    a('s_mul_i32 s%d, s%d, 0x%x' % (sTmp, sIdx, 80 * 8192))
    a('s_lshl_b32 s%d, s%d, 8' % (sTmp2, sH))
    a('s_add_u32 s%d, s%d, s%d' % (sTmp, sTmp, sTmp2))
    a('s_mov_b32 s%d, 0x%x' % (WQ + 2, 79 * 8192 + 256))
    a('s_mov_b32 s%d, 0x20000' % (WQ + 3))
    a('s_mov_b32 s%d, 2560' % (X + 2))
    a('s_mov_b32 s%d, 0x20000' % (X + 3))
    a('s_movk_i32 s%d, 0x2000' % (sFast + 1))
    a('s_mov_b32 s%d, 0' % sFast)
    a('s_waitcnt lgkmcnt(0)')
    a('s_add_u32 s%d, s10, s%d' % (WQ, sTmp))
    a('s_addc_u32 s%d, s11, 0' % (WQ + 1))
    a('s_mov_b32 s%d, s4' % X)
    a('s_mov_b32 s%d, s5' % (X + 1))
    a('s_add_u32 s%d, s6, s%d' % (K, sKoff))
    a('s_addc_u32 s%d, s7, 0' % (K + 1))
    a('s_load_dword s%d, s[18:19], 0' % sT)
    a('buffer_load_dwordx4 %s, v%d, %s, 0 offen' % (vr(vX), vT, srd(X)), tag='x0')
    a('buffer_load_dwordx4 %s, v%d, %s, 0 offen offset:16' % (vr(vX + 4), vT, srd(X)), tag='x1')
    a('buffer_load_dwordx2 %s, v%d, %s, 0 offen offset:32' % (vr(vX + 8, 2), vT, srd(X)), tag='x2')
    sWqOff = sFast

    def wq_load(t):
        a('buffer_load_dwordx4 %s, v%d, %s, s%d offen%s' % (vr(vWb + 4 * t), vWQ, srd(WQ), sWqOff, wflag), tag=('wq', t))
        if t < 19:
            a('s_add_u32 s%d, s%d, s%d' % (sWqOff, sWqOff, sWqOff + 1))

    plan = agent_plan or 'w' * 20 + 'k' * Fag + '|'
    first, rest = plan.split('|')
    rest += 'k' * (nm - plan.count('k'))
    assert plan.count('w') == 20
    cnt = {'w': 0, 'k': 0}

    def agent_issue(ch):
        (wq_load if ch == 'w' else kv_load)(cnt[ch])
        cnt[ch] += 1

    for ch in first:
        agent_issue(ch)
    stamp(1)
    agent_vm = list(a.vm)

    a.label('L_setup')
    cur_off[0] = None
    a('s_add_u32 s%d, s8, s%d' % (V, sKoff))
    a('s_addc_u32 s%d, s9, 0' % (V + 1))
    a('s_mul_i32 s%d, s%d, %d' % (sTmp, sH, 128 * 1280))
    a('s_add_u32 s%d, s12, s%d' % (WO, sTmp))
    a('s_addc_u32 s%d, s13, 0' % (WO + 1))
    a('s_mov_b32 s%d, s18' % WS)
    a('s_mov_b32 s%d, s19' % (WS + 1))
    a('s_mov_b32 s%d, s14' % OUT)
    a('s_mov_b32 s%d, s15' % (OUT + 1))
    for r_, sz in ((V, 0x100000), (WS, WS_BYTES), (OUT, 2560)):
        a('s_mov_b32 s%d, 0x%x' % (r_ + 2, sz))
        a('s_mov_b32 s%d, 0x20000' % (r_ + 3))
    a('s_cmp_lt_u32 s%d, %d' % (sIdx, 0 if dbg_nowo else 5))
    a('s_cselect_b32 s%d, %d, 0' % (WO + 2, 128 * 1280))
    a('s_mov_b32 s%d, 0x20000' % (WO + 3))
    a('s_mov_b32 s%d, 0x3e0293ee' % sCS)
    a('s_mov_b32 s%d, 0x01000100' % sSelLo)
    a('s_mov_b32 s%d, 0x03020302' % sSelHi)
    a('s_mov_b32 s%d, 0x10000' % sSpin)
    a('s_getreg_b32 s%d, hwreg(HW_REG_XCC_ID, 0, 4)' % sTX)
    a('v_and_b32 v%d, 1, v0' % vT)
    a('v_lshlrev_b32 v%d, 4, v%d' % (vT, vT))
    a('v_mov_b32 v%d, 0xffff' % (vT + 1))
    a('v_lshlrev_b32 v%d, v%d, v%d' % (vT, vT, vT + 1))
    a('v_bfe_u32 v%d, v0, 1, 2' % (vT + 1))
    for r in range(4):
        a('v_cmp_eq_u32 vcc, %d, v%d' % (r, vT + 1))
        a('v_cndmask_b32 v%d, 0, v%d, vcc' % (vMask + r, vT))
    a('v_mov_b32 v%d, 0x3ff' % vTag)
    a('v_and_b32 v%d, 31, v0' % vT)
    a('v_lshlrev_b32 v%d, 4, v%d' % (vT, vT))
    a('v_lshrrev_b32 v%d, 5, v%d' % (vT + 1, vLane))
    a('v_xor_b32 v%d, s%d, v%d' % (vT + 2, sB, vT + 1))
    a('v_lshl_add_u32 v%d, v%d, 9, v%d' % (vT + 2, vT + 2, vT))
    a('s_lshl_b32 s%d, s%d, 10' % (sTmp, sH))
    a('s_add_u32 s%d, s%d, %d' % (sTmp, sTmp, ML_OFF))
    a('v_add_u32 v%d, s%d, v%d' % (vMLl, sTmp, vT + 2))
    a('s_lshl3_add_u32 s%d, s%d, s%d' % (sTmp2, sIdx, sW))
    a('s_lshl4_add_u32 s%d, s%d, s%d' % (sTmp, sTmp2, sTmp))
    a('v_mov_b32 v%d, s%d' % (vMLs, sTmp))
    a('v_lshl_add_u32 v%d, v%d, 12, v%d' % (vT, vT + 1, vT))
    a('s_lshl4_add_u32 s%d, s%d, s%d' % (sTmp, sH, sIdx))
    a('s_lshl_b32 s%d, s%d, 9' % (sTmp, sTmp))
    a('s_add_u32 s%d, s%d, %d' % (sTmp, sTmp, QX_OFF))
    a('v_add_u32 v%d, s%d, v%d' % (vQs, sTmp, vT))
    a('s_lshl1_add_u32 s%d, s%d, s%d' % (sTmp, sH, sB))
    a('s_lshl_b32 s%d, s%d, 12' % (sTmp, sTmp))
    a('s_add_u32 s%d, s%d, %d' % (sTmp, sTmp, QX_OFF))
    a('v_lshl_add_u32 v%d, v%d, 4, s%d' % (vQg, vLane, sTmp))
    a('v_and_b32 v%d, 1, v%d' % (vT, vG))
    a('v_lshlrev_b32 v%d, 4, v%d' % (vT, vT))
    a('v_lshl_add_u32 v%d, v%d, 5, v%d' % (vT, vC, vT))
    a('s_mul_i32 s%d, s%d, %d' % (sTmp, sW, O_STRIDE))
    a('v_add_u32 v%d, s%d, v%d' % (vOw, sTmp, vT))
    a('v_and_b32 v%d, 7, v0' % (vT + 1))
    a('v_mul_u32_u24 v%d, %d, v%d' % (vT, O_STRIDE, vT + 1))
    a('v_lshl_add_u32 v%d, v%d, 4, v%d' % (vT, vG, vT))
    a('s_lshl_b32 s%d, s%d, 6' % (sTmp, sW))
    a('v_add_u32 v%d, s%d, v%d' % (vOr, sTmp, vT))
    a('v_mul_u32_u24 v%d, %d, v%d' % (vT, Y_STRIDE, vT + 1))
    a('v_lshrrev_b32 v%d, 3, v0' % (vT + 1))
    a('v_lshl_add_u32 v%d, v%d, 4, v%d' % (vYr, vT + 1, vT))
    a('s_mul_i32 s%d, s%d, %d' % (sTmp, sW, Y_STRIDE))
    a('v_lshl_add_u32 v%d, v%d, 4, s%d' % (vYw, vLane, sTmp))
    a('s_lshl3_add_u32 s%d, s%d, s%d' % (sTmp, sH, sW))
    a('s_lshl_b32 s%d, s%d, 9' % (sTmp, sTmp))
    a('s_add_u32 s%d, s%d, %d' % (sTmp, sTmp, OX_OFF))
    a('v_lshrrev_b32 v%d, 3, v%d' % (vT, vC))
    a('v_and_b32 v%d, 3, v0' % (vT + 1))
    a('v_lshl_add_u32 v%d, v%d, 2, v%d' % (vT, vT, vT + 1))
    a('v_lshl_add_u32 v%d, v%d, 2, v%d' % (vT, vT, vG))
    a('v_lshl_add_u32 v%d, v%d, 4, s%d' % (vOg, vT, sTmp))
    a('s_lshl_b32 s%d, s%d, 6' % (sTmp2, sIdx))
    a('s_add_u32 s%d, s%d, s%d' % (sTmp, sTmp, sTmp2))
    a('v_lshl_add_u32 v%d, v%d, 4, s%d' % (vOs, vG, sTmp))
    a('s_lshl3_add_u32 s%d, s%d, s%d' % (sTmp, sIdx, sW))
    a('s_lshl_b32 s%d, s%d, 5' % (sTmp, sTmp))
    a('s_add_u32 s%d, s%d, s%d' % (sTmp, sTmp, sH))
    a('s_lshl_b32 s%d, s%d, 7' % (sTmp, sTmp))
    a('s_add_u32 s%d, s%d, %d' % (sTmp, sTmp, Y_OFF))
    a('v_lshrrev_b32 v%d, 3, v%d' % (vT, vLane))
    a('v_lshl_add_u32 v%d, v%d, 4, s%d' % (vYg, vT, sTmp))
    a('v_lshrrev_b32 v%d, 4, v0' % vT)
    a('v_mul_u32_u24 v%d, 5120, v%d' % (vWO, vT))
    a('v_lshl_add_u32 v%d, v%d, 4, v%d' % (vWO, vC, vWO))
    a('s_lshl_b32 s%d, s%d, 8' % (sTmp, sIdx))
    a('v_add_u32 v%d, s%d, v%d' % (vWO, sTmp, vWO))
    a('s_lshr_b32 s%d, s%d, 3' % (sJJ, sH))
    a('s_mul_i32 s%d, s%d, 3' % (sJJ, sJJ))
    a('s_add_u32 s%d, s%d, s%d' % (sJJ, sJJ, sIdx))
    a('s_sub_u32 s%d, s%d, 5' % (sJJ, sJJ))
    a('s_and_b32 s%d, s%d, 7' % (sTmp, sH))
    a('s_mul_i32 s%d, s%d, 10' % (sTmp, sTmp))
    a('s_add_u32 s%d, s%d, s%d' % (sTmp, sTmp, sJJ))
    a('s_lshr_b32 s4, s%d, 1' % sTmp)
    a('s_lshl_b32 s4, s4, 12')
    a('s_and_b32 s5, s%d, 1' % sTmp)
    a('s_lshl_b32 s5, s5, 6')
    a('s_add_u32 s4, s4, s5')
    a('s_add_u32 s4, s4, %d' % Y_OFF)
    a('v_lshrrev_b32 v%d, 2, v%d' % (vT, vLane))
    a('v_and_b32 v%d, 3, v0' % (vT + 1))
    a('v_lshl_add_u32 v%d, v%d, 3, v%d' % (vT, vT, vT + 1))
    a('v_lshl_add_u32 v%d, v%d, 4, s4' % (vCo, vT))
    a('s_lshr_b32 s4, s%d, 4' % sTmp)
    a('s_lshl_b32 s4, s4, 7')
    a('s_and_b32 s5, s%d, 3' % sTmp)
    a('s_lshl_b32 s5, s5, 5')
    a('s_add_u32 s4, s4, s5')
    a('s_bfe_u32 s5, s%d, 0x10002' % sTmp)
    a('s_lshl2_add_u32 s4, s5, s4')
    a('s_bfe_u32 s5, s%d, 0x10003' % sTmp)
    a('s_mul_i32 s5, s5, 640')
    a('s_add_u32 s4, s4, s5')
    a('v_lshlrev_b32 v%d, 3, v%d' % (vT + 1, vT + 1))
    a('v_bfe_u32 v%d, v0, 2, 1' % vT)
    a('v_lshl_add_u32 v%d, v%d, 1, v%d' % (vT + 1, vT, vT + 1))
    a('v_bfe_u32 v%d, v0, 3, 1' % vT)
    a('v_add3_u32 v%d, s4, v%d, v%d' % (vCst, vT, vT + 1))
    a('v_lshlrev_b32 v%d, 1, v%d' % (vCst, vCst))
    a('s_waitcnt lgkmcnt(0)')
    a('s_mul_i32 s%d, s%d, 0x9e3779b1' % (sT, sT))
    a('s_add_u32 s%d, s%d, 0x7f4a7c15' % (sT, sT))
    a('s_and_b32 s%d, s%d, 0x3ff' % (sT0, sT))
    a('s_bfe_u32 s%d, s%d, 0xa000a' % (sT1, sT))
    a('s_bfe_u32 s%d, s%d, 0xa0014' % (sT2, sT))
    a('s_lshl4_add_u32 s%d, s%d, s%d' % (sTX, sT, sTX))
    a('s_cmp_eq_u32 s%d, %d' % (sW, 9 if dbg_noagent else 0))
    a('s_cbranch_scc1 L_agent2')
    a.vm = [(('kv', n), True) for n in range(F0)]
    for n in range(F0, nm):
        a.wait_vm(('kv', n - F))
        kv_load(n)
    a('s_branch L_merge')

    a.label('L_agent2')
    a.vm = agent_vm
    cur_off[0] = None
    a.wait_vm('x2')

    def xdup(t):
        a('v_perm_b32 v%d, v%d, v%d, s%d' % (vT + (t & 1), vX + t // 2, vX + t // 2, sSelHi if t & 1 else sSelLo))

    def q_step(t):
        if t == 0:
            xdup(0)
        for r in range(4):
            a('v_and_b32 v%d, v%d, v%d' % (vA + r, vT + (t & 1), vMask + r))
        if t < 19:
            xdup(t + 1)
        a.wait_vm(('wq', t))
        a('v_mfma_f32_16x16x32_bf16 %s, %s, %s, %s' % (vr(vAcc), vr(vA), vr(vWb + 4 * t), vr(vAcc) if t else '0'))
        if t == 19:
            put_tag(vAcc)
            a('buffer_store_dwordx4 %s, v%d, %s, 0 offen sc1' % (vr(vAcc), vQs, srd(WS)), tag='qst')

    tq = 0
    for ch in rest:
        while sum(1 for _, ld in a.vm if ld) >= Fag:
            oldest = [t for t, ld in a.vm if ld][0]
            if oldest[0] == 'wq':
                assert oldest[1] == tq
                q_step(tq)
                tq += 1
            else:
                a.wait_vm(oldest)
        agent_issue(ch)
    assert tq == 20
    assert [t for t, ld in a.vm if ld][-F:] == [('kv', n) for n in range(nm - F, nm)]

    a.label('L_merge')
    a.vm = [(('kv', n), True) for n in range(nm - max(F, Fag), nm)]
    cur_off[0] = None

    vPoll = vX + 4
    vS, vTT = vX, vX + 8
    pend = []
    bank_of = [0, 2, 1, 3]
    state = {'polled': False, 'scaled': False, 'q': False, 'qg': False}

    def qgather():
        for j in range(4):
            a('buffer_load_dwordx4 %s, v%d, %s, 0 offen offset:%d sc1' % (vr(vWb + 4 * j), vQg, srd(WS), 1024 * j),
              tag=('qg', j))

    def q_code():
        a.comment('q of this (batch, head): sum of the eight row-block products')
        a.label('L_q_check')
        untag(vWb, 4, vT)
        if not (dbg_nogather or dbg_noagent):
            a('s_cbranch_vccnz L_q_retry')
        a.label('L_q_ok')
        swap_reduce('v_add_f32', range(vWb, vWb + 4), range(vWb + 4, vWb + 8), 32)
        a('v_cvt_pk_bf16_f32 v%d, v%d, v%d' % (vQ, vWb, vWb + 1))
        a('v_cvt_pk_bf16_f32 v%d, v%d, v%d' % (vQ + 1, vWb + 2, vWb + 3))
        a('v_mov_b32 v%d, v%d' % (vQ + 2, vQ))
        a('v_mov_b32 v%d, v%d' % (vQ + 3, vQ + 1))
        a('v_permlane16_swap_b32 v%d, v%d' % (vQ, vQ + 2))
        a('v_permlane16_swap_b32 v%d, v%d' % (vQ + 1, vQ + 3))
        state['q'] = True
        stamp(2)

    def score(n):
        rb = vRing + 4 * (n % NS)
        s = vS + (n & 7)
        for k in range(4):
            a('v_dot2_f32_bf16 v%d, v%d, v%d, %s' % (s, rb + k, vQ + k, 'v%d' % s if k else '0'))
            if pend and k in (0, 2):
                pend.pop(0)()
        if n % 4 == 3:
            assert not pend
            s0 = vS + (n & 4)
            u = vU + n // 4
            pend.extend([
                lambda: dpp('v_add_f32', vTT, s0, s0, 'row_ror:8', 0x3),
                lambda: dpp('v_add_f32', vTT, s0 + 1, s0 + 1, 'row_ror:8', 0xc),
                lambda: dpp('v_add_f32', vTT + 1, s0 + 2, s0 + 2, 'row_ror:8', 0x3),
                lambda: dpp('v_add_f32', vTT + 1, s0 + 3, s0 + 3, 'row_ror:8', 0xc),
                lambda: dpp('v_add_f32', u, vTT, vTT, 'row_shl:4', 0x5),
                lambda: dpp('v_add_f32', u, vTT + 1, vTT + 1, 'row_shr:4', 0xa),
                lambda: dpp('v_add_f32', u, u, u, 'quad_perm:[1,0,3,2]'),
                lambda: dpp('v_add_f32', u, u, u, 'quad_perm:[2,3,0,1]'),
            ])

    def softmax():
        while pend:
            pend.pop(0)()
        stamp(3)
        a('v_max3_f32 v%d, v%d, v%d, v%d' % (vM, vU, vU + 1, vU + 2))
        a('v_max3_f32 v%d, v%d, v%d, v%d' % (vM, vM, vU + 3, vU + 4))
        a('v_max3_f32 v%d, v%d, v%d, v%d' % (vM, vM, vU + 5, vU + 6))
        a('v_max_f32 v%d, v%d, v%d' % (vM, vM, vU + 7))
        dpp('v_max_f32', vM, vM, vM, 'row_ror:4')
        dpp('v_max_f32', vM, vM, vM, 'row_ror:8')
        swap_reduce('v_max_f32', [vM], [vT], 16)
        swap_reduce('v_max_f32', [vM], [vT], 32)
        a('v_mul_f32 v%d, s%d, v%d' % (vM, sCS, vM))
        for k in range(8):
            a('v_fma_f32 v%d, v%d, s%d, -v%d' % (vU + k, vU + k, sCS, vM))
        for k in range(8):
            a('v_exp_f32 v%d, v%d' % (vU + k, vU + k))
        vML = vX
        a('v_add_f32 v%d, v%d, v%d' % (vML + 2, vU, vU + 1))
        for k in range(2, 8):
            a('v_add_f32 v%d, v%d, v%d' % (vML + 2, vML + 2, vU + k))
        for k in range(8):
            a('v_cvt_pk_bf16_f32 v%d, v%d, v%d' % (vU + k, vU + k, vU + k))
        dpp('v_add_f32', vML + 2, vML + 2, vML + 2, 'row_ror:4')
        a('v_mov_b32 v%d, v%d' % (vML, vM))
        a('v_mov_b32 v%d, s%d' % (vML + 1, sT))
        dpp('v_add_f32', vML + 2, vML + 2, vML + 2, 'row_ror:8')
        a('v_mov_b32 v%d, s%d' % (vML + 3, sTX))
        swap_reduce('v_add_f32', [vML + 2], [vT], 16)
        swap_reduce('v_add_f32', [vML + 2], [vT], 32)
        a('s_mov_b64 exec, 1')
        a('buffer_store_dwordx4 %s, v%d, %s, 0 offen sc1' % (vr(vML), vMLs, srd(WS)), tag='mlst')
        a('s_mov_b64 exec, -1')
        build_a(0)

    def build_a(i):
        for r in range(4):
            a('v_and_b32_dpp v%d, v%d, v%d row_newbcast:%d row_mask:0xf bank_mask:0xf' %
              (vA + 4 * (i & 1) + r, vU + i // 4, vMask + r, 4 * bank_of[i % 4]))

    def scale_code():
        a.comment('combine the 32 wave statistics of this (batch, head); compare the dies of the head group')
        a.label('L_ml_check')
        a('v_xor_b32 v%d, s%d, v%d' % (vT, sT, vPoll + 1))
        a('v_xor_b32 v%d, s%d, v%d' % (vT + 1, sTX, vPoll + 3))
        a('v_and_or_b32 v%d, v%d, -16, v%d' % (vT, vT + 1, vT))
        a('v_cmp_ne_u32 vcc, 0, v%d' % vT)
        a('s_cbranch_vccnz L_ml_retry')
        a.label('L_ml_ok')
        a('v_cmp_ne_u32 s[%d:%d], 0, v%d' % (sFast, sFast + 1, vT + 1))
        vMM = vT + 1
        dpp('v_max_f32', vMM, vPoll, vPoll, 'quad_perm:[1,0,3,2]')
        dpp('v_max_f32', vMM, vMM, vMM, 'quad_perm:[2,3,0,1]')
        dpp('v_max_f32', vMM, vMM, vMM, 'row_ror:4')
        dpp('v_max_f32', vMM, vMM, vMM, 'row_ror:8')
        swap_reduce('v_max_f32', [vMM], [vT], 16)
        a('v_sub_f32 v%d, v%d, v%d' % (vPoll, vPoll, vMM))
        a('v_sub_f32 v%d, v%d, v%d' % (vScale, vM, vMM))
        a('v_exp_f32 v%d, v%d' % (vPoll, vPoll))
        a('v_exp_f32 v%d, v%d' % (vScale, vScale))
        a('v_mul_f32 v%d, v%d, v%d' % (vPoll, vPoll, vPoll + 2))
        dpp('v_add_f32', vPoll, vPoll, vPoll, 'quad_perm:[1,0,3,2]')
        dpp('v_add_f32', vPoll, vPoll, vPoll, 'quad_perm:[2,3,0,1]')
        dpp('v_add_f32', vPoll, vPoll, vPoll, 'row_ror:4')
        dpp('v_add_f32', vPoll, vPoll, vPoll, 'row_ror:8')
        swap_reduce('v_add_f32', [vPoll], [vT], 16)
        a('v_rcp_f32 v%d, v%d' % (vPoll, vPoll))
        a('v_mul_f32 v%d, v%d, v%d' % (vScale, vScale, vPoll))
        state['scaled'] = True

    def process(n):
        if n < 32:
            score(n)
            if n == 31:
                softmax()
            return
        i = n - 32
        if state['polled'] and not state['scaled'] and 'poll' not in [t for t, _ in a.vm]:
            scale_code()
        a('v_mfma_f32_16x16x32_bf16 %s, %s, %s, %s' %
          (vr(vAcc), vr(vA + 4 * (i & 1)), vr(vRing + 4 * (n % NS)), vr(vAcc) if i else '0'))
        if i < 31:
            build_a(i + 1)

    def extras(n):
        if n == gather_at:
            if not dbg_nogather:
                qgather()
            state['qg'] = True
        if n == poll_at:
            assert done > 32
            if pre_ox:
                a('buffer_load_dword v%d, v%d, %s, 0 offen sc1' % (vWQ, vOg, srd(WS)), tag='preox')
            a('buffer_load_dwordx4 %s, v%d, %s, 0 offen sc1' % (vr(vPoll), vMLl, srd(WS)), tag='poll')
            state['polled'] = True
        for t in range(4):
            if wo_land is None and wo_at[t] == n:
                wo_load(t)

    def wo_load(t):
        assert state['q']
        a('buffer_load_dwordx4 %s, v%d, %s, 0 offen offset:%d%s' %
          (vr(vWb + 4 * t), vWO, srd(WO), 1280 * t, wflag), tag=('wo', t))

    assert gather_at >= nm
    issued, done, landed = nm, 0, nm - F
    while done < 64:
        if landed < 64:
            assert landed < issued
            a.wait_vm(('kv', landed))
            landed += 1
        while issued < 64 and issued - landed < (Fend if issued >= end_at else F):
            assert issued - done < NS
            extras(issued)
            kv_load(issued)
            issued += 1
            if issued == 64:
                extras(64)
        for t in range(4):
            if wo_land is not None and wo_land[t] == landed and ('wo', t) not in a.issued:
                wo_load(t)
        if not state['q']:
            if state['qg'] and ('qg', 3) not in [t for t, _ in a.vm]:
                q_code()
            continue
        for _ in range(catch):
            if done < landed:
                process(done)
                done += 1
    assert state['scaled']
    stamp(4)

    a('s_mov_b32 s4, 0x00010001')
    a('s_mov_b32 s5, 0x00010001')
    a('s_mov_b32 s6, 0x01010101')
    a('s_mov_b32 s7, 0x01010101')
    a('s_mov_b32 exec_hi, 0')
    for r in range(4):
        a('v_mul_f32 v%d, v%d, v%d' % (vAcc + r, vScale, vAcc + r))
    a('ds_write_b128 v%d, %s offset:%d' % (vOw, vr(vAcc), LDS_O))
    a('s_mov_b64 exec, -1')
    a('s_cmp_eq_u64 s[%d:%d], 0' % (sFast, sFast + 1))
    a('s_waitcnt lgkmcnt(0)')
    a('s_barrier')
    vO = vU
    a('ds_read_b128 %s, v%d offset:%d' % (vr(vO), vOr, LDS_O))
    a('s_waitcnt lgkmcnt(0)')
    for ctrl in ('quad_perm:[1,0,3,2]', 'quad_perm:[2,3,0,1]', 'row_half_mirror'):
        for t in range(4):
            dpp('v_add_f32', vO + t, vO + t, vO + t, ctrl)
    put_tag(vO)
    a('s_mov_b64 exec, s[4:5]')
    if fast:
        a('s_cbranch_scc0 L_o_far')
        a('buffer_store_dwordx4 %s, v%d, %s, 0 offen' % (vr(vO), vOs, srd(WS)))
        a.label('L_o_sent')
    else:
        a('buffer_store_dwordx4 %s, v%d, %s, 0 offen sc1' % (vr(vO), vOs, srd(WS)))
    a('s_mov_b64 exec, -1')
    a('s_cmp_ge_u32 s%d, 5' % sIdx)
    a('s_cbranch_scc1 L_not_proj')
    vP = vRing
    a.label('L_o_poll')
    a('buffer_load_dwordx4 %s, v%d, %s, 0 offen sc1' % (vr(vP), vOg, srd(WS)))
    a('s_waitcnt vmcnt(0)')
    a.vm = []
    untag(vP, 1, vT)
    a('s_cbranch_vccnz L_o_retry')
    a.label('L_o_ok')
    for ctrl in ('quad_perm:[1,0,3,2]', 'quad_perm:[2,3,0,1]'):
        for t in range(4):
            dpp('v_add_f32', vP + t, vP + t, vP + t, ctrl)
    for t in range(4):
        a('v_cvt_pk_bf16_f32 v%d, v%d, v%d' % (vP + t, vP + t, vP + t))
    vA2 = vRing + 4
    for t in range(4):
        for r in range(4):
            a('v_and_b32 v%d, v%d, v%d' % (vA2 + 4 * t + r, vP + t, vMask + r))
        if t:
            a('v_mfma_f32_16x16x32_bf16 %s, %s, %s, %s' %
              (vr(vAcc), vr(vA2 + 4 * t - 4), vr(vWb + 4 * t - 4), vr(vAcc) if t > 1 else '0'))
    a('v_mfma_f32_16x16x32_bf16 %s, %s, %s, %s' % (vr(vAcc), vr(vA2 + 12), vr(vWb + 12), vr(vAcc)))
    a('ds_write_b128 v%d, %s offset:%d' % (vYw, vr(vAcc), LDS_Y))
    a('s_waitcnt lgkmcnt(0)')
    a('s_barrier')
    a('ds_read_b128 %s, v%d offset:%d' % (vr(vP), vYr, LDS_Y))
    a('s_waitcnt lgkmcnt(0)')
    for ctrl in ('quad_perm:[1,0,3,2]', 'quad_perm:[2,3,0,1]', 'row_half_mirror'):
        for t in range(4):
            dpp('v_add_f32', vP + t, vP + t, vP + t, ctrl)
    put_tag(vP)
    a('s_mov_b64 exec, s[6:7]')
    a('buffer_store_dwordx4 %s, v%d, %s, 0 offen sc1' % (vr(vP), vYg, srd(WS)))
    if stamps:
        a('s_mov_b64 exec, -1')
        a('s_branch L_fin')
    else:
        a('s_endpgm')
    a.label('L_o_retry')
    a('s_sub_u32 s%d, s%d, 1' % (sSpin, sSpin))
    a('s_cbranch_scc0 L_o_poll')
    a('s_nop 1')
    a('s_branch L_o_ok')
    if fast:
        a.label('L_o_far')
        a('buffer_store_dwordx4 %s, v%d, %s, 0 offen sc1' % (vr(vO), vOs, srd(WS)))
        a('s_branch L_o_sent')

    a.label('L_not_proj')
    a('s_cmp_lg_u32 s%d, 0' % sW)
    a('s_cbranch_scc1 L_fin')
    a('s_cmp_ge_u32 s%d, 10' % sJJ)
    a('s_cbranch_scc1 L_not_cons')
    if warm:
        a('s_mov_b64 vcc, -1')
        a('s_branch L_cons_ok')
    a.label('L_cons_poll')
    for n in range(2):
        a('buffer_load_dwordx4 %s, v%d, %s, 0 offen offset:%d sc1' % (vr(vP + 4 * n), vCo, srd(WS), 2048 * n))
    untag(vP, 2, vT, waits=True)
    a.vm = []
    a('s_cbranch_vccnz L_cons_retry')
    a.label('L_cons_ok')
    dpp('v_add_f32', vT, vP, vP, 'row_ror:8', 0x3)
    dpp('v_add_f32', vT + 1, vP + 2, vP + 2, 'row_ror:8', 0x3)
    dpp('v_add_f32', vT, vP + 1, vP + 1, 'row_ror:8', 0xc)
    dpp('v_add_f32', vT + 1, vP + 3, vP + 3, 'row_ror:8', 0xc)
    dpp('v_add_f32', vP, vT, vT, 'row_shl:4', 0x5)
    dpp('v_add_f32', vP, vT + 1, vT + 1, 'row_shr:4', 0xa)
    swap_reduce('v_add_f32', [vP], [vT], 16)
    swap_reduce('v_add_f32', [vP], [vT], 32)
    a('v_cvt_pk_bf16_f32 v%d, v%d, v%d' % (vP, vP, vP))
    if warm:
        a('s_cbranch_vccnz L_cons_poll')
    if dbglimit:
        a('s_memrealtime s[4:5]')
        a('s_waitcnt lgkmcnt(0)')
        a('s_sub_u32 s4, s4, s%d' % sStamp)
        a('s_cmp_lt_u32 s4, %d' % dbglimit)
        a('s_cbranch_scc1 L_dbg_ok')
        a('v_cvt_f32_u32 v%d, s4' % vP)
        a('v_cvt_pk_bf16_f32 v%d, v%d, v%d' % (vP, vP, vP))
        a.label('L_dbg_ok')
    a('s_mov_b64 exec, 0xffff')
    a('buffer_store_short v%d, v%d, %s, 0 offen%s' % (vP, vCst, srd(OUT), outflag))
    if stamps:
        a('s_mov_b64 exec, -1')
        a('s_branch L_fin')
    else:
        a('s_endpgm')
    a.label('L_cons_retry')
    a('s_sub_u32 s%d, s%d, 1' % (sSpin, sSpin))
    a('s_cbranch_scc0 L_cons_poll')
    a('s_mov_b64 vcc, 0')
    a('s_branch L_cons_ok')

    a.label('L_ml_retry')
    a('s_sub_u32 s%d, s%d, 1' % (sSpin, sSpin))
    a('s_cbranch_scc1 L_ml_ok')
    a('buffer_load_dwordx4 %s, v%d, %s, 0 offen sc1' % (vr(vPoll), vMLl, srd(WS)))
    a('s_waitcnt vmcnt(0)')
    a('s_branch L_ml_check')

    a.label('L_q_retry')
    a('s_sub_u32 s%d, s%d, 1' % (sSpin, sSpin))
    a('s_cbranch_scc1 L_q_ok')
    qgather()
    a('s_waitcnt vmcnt(0)')
    a('s_branch L_q_check')

    a.label('L_not_cons')
    a('s_lshl3_add_u32 s%d, s%d, s%d' % (sTmp, sH, sIdx))
    a('s_cmp_lg_u32 s%d, 0xff' % sTmp)
    a('s_cbranch_scc1 L_fin')
    a('v_lshlrev_b32 v%d, 4, v%d' % (vT + 1, vLane))
    a.label('L_ep_poll')
    a('s_mov_b32 s4, %d' % ML_OFF)
    for n in range(32):
        a('buffer_load_dword v%d, v%d, %s, s4 offen offset:%d sc1' % (vP + n, vT + 1, srd(WS), 1024 * (n % 4) + 4))
        if n % 4 == 3 and n < 31:
            a('s_add_u32 s4, s4, 0x1000')
    a('s_waitcnt vmcnt(0)')
    a('v_xor_b32 v%d, s%d, v%d' % (vT, sT, vP))
    for n in range(1, 32):
        a('v_bitop3_b32 v%d, v%d, s%d, v%d bitop3:0xf6' % (vT, vT, sT, vP + n))
    a('v_cmp_ne_u32 vcc, 0, v%d' % vT)
    a('s_cbranch_vccz L_ep_ok')
    a('s_sub_u32 s%d, s%d, 1' % (sSpin, sSpin))
    a('s_cbranch_scc0 L_ep_poll')
    a.label('L_ep_ok')
    a('v_mov_b32 v%d, s%d' % (vT, sT))
    a('v_mov_b32 v%d, 0' % (vT + 1))
    a('s_mov_b64 exec, 1')
    a('buffer_store_dword v%d, v%d, %s, 0 offen sc1' % (vT, vT + 1, srd(WS)))
    a('s_mov_b64 exec, -1')
    a.label('L_fin')
    if stamps:
        stamp(5)
        a('s_waitcnt vmcnt(0)')
        stamp(6)
        a('s_getreg_b32 s%d, hwreg(HW_REG_XCC_ID)' % (sStamp + 14))
        a('s_mov_b32 s%d, s%d' % (sStamp + 15, sSpin))
        a('s_waitcnt lgkmcnt(0)')
        if dbgout:
            a('s_cmp_lg_u32 s%d, 0' % sW)
            a('s_cbranch_scc1 L_end')
            a('s_mov_b32 s24, s16')
            a('s_mov_b32 s25, s17')
            a('s_mov_b32 s26, 256')
            a('v_mov_b32 v%d, 0' % vT)
            for k in range(7):
                a('v_writelane_b32 v%d, s%d, %d' % (vT, sStamp + 2 * k, k))
                a('s_not_b32 s4, s%d' % (sStamp + 2 * k))
                a('v_writelane_b32 v%d, s4, %d' % (vT, 8 + k))
            a('v_lshlrev_b32 v%d, 2, v%d' % (vT + 1, vLane))
            a('s_mov_b64 exec, 0xffff')
            a('buffer_atomic_umax v%d, v%d, s[24:27], 0 offen' % (vT, vT + 1))
            a('s_endpgm')
        a('v_mov_b32 v%d, 0' % vT)
        for k in range(16):
            a('v_writelane_b32 v%d, s%d, %d' % (vT, sStamp + k, k))
        a('s_lshl3_add_u32 s%d, s2, s%d' % (sTmp, sW))
        a('s_lshl_b32 s%d, s%d, 6' % (sTmp, sTmp))
        a('s_add_u32 s%d, s%d, 0x%x' % (sTmp, sTmp, STAMP_OFF))
        a('v_lshlrev_b32 v%d, 2, v%d' % (vT + 1, vLane))
        a('s_mov_b64 exec, 0xffff')
        a('buffer_store_dword v%d, v%d, %s, s%d offen' % (vT, vT + 1, srd(WS), sTmp))
    a.label('L_end')
    a('s_endpgm')

    out = HEADER
    out += '; @launch grid=(256,1,1) block=(512,1,1) lds=16384\n'
    out += '.amdgcn_target "amdgcn-amd-amdhsa--gfx950"\n.text\n.globl %s_kernel\n.p2align 8\n' % NAME
    out += '.type %s_kernel,@function\n%s_kernel:\n' % (NAME, NAME)
    out += a.text()
    out += '''.section .rodata,"a"
.p2align 6
.amdhsa_kernel %s_kernel
  .amdhsa_next_free_vgpr 256
  .amdhsa_next_free_sgpr 96
  .amdhsa_accum_offset 256
  .amdhsa_group_segment_fixed_size 0
  .amdhsa_kernarg_size 64
  .amdhsa_user_sgpr_count 2
  .amdhsa_user_sgpr_kernarg_segment_ptr 1
  .amdhsa_system_sgpr_workgroup_id_x 1
  .amdhsa_float_denorm_mode_32 3
.end_amdhsa_kernel
''' % NAME
    return out


if __name__ == '__main__':
    kw = {}
    for arg in sys.argv[2:]:
        k, v = arg.split('=', 1)
        kw[k] = eval(v)
    text = gen(**kw)
    open(sys.argv[1], 'w').write(text)
```

```python
import sys
from asmlib import Asm
from gen2 import HEADER, NAME

ML_OFF = 4096
QX_OFF = 64 << 10
OX_OFF = 384 << 10
Y_OFF = 512 << 10
STAMP_OFF = 1 << 22
O_STRIDE = 544
Y_STRIDE = 1088
LDS_O, LDS_Y, LDS_QP, LDS_Q, LDS_F = 0, 4352, 13056, 21248, 21504
LDS_BYTES = 22016
OOB = 0x40000000


def gen(F=4, NS=32, order='iiwwwssiii', kvflag=' nt', wflag=' nt', start='kxwwwk', Fs=None, gather_at=16,
        q_at=23, catch=4, poll_at=50, wo_land=(60, 61, 62, 63), gw=0, fast=True, pre_code=True, pre_ox=False,
        npoll=1, pgap=2, prescale=True, setup_at=(8, 12), stamps=False, tailst=False, fine=False,
        dbg_noq=False, dbg_nowo=False, dbg_nox=False, dbg_lin=False, osleep=0, dbg_st=None, dbg_g=False, dbg_noml=False):
    a = Asm()
    stamps |= tailst or fine
    dbg_nox |= dbg_noq
    WS_BYTES = (STAMP_OFF + 256 * 8 * 128) if stamps else (1 << 20)
    sW, sH, sB, sS = 20, 21, 22, 23
    K, V, WQ, WO, X, WS, OUT = 24, 28, 32, 36, 40, 44, 48
    sOff, sT, sT0, sT1, sT2, sCS, sSpin, sTmp, sTmp2, sIdx, sKoff, sTmp3 = range(52, 64)
    sOdd = 64
    sStamp = 66
    sTX, sC0, sFast = 98, 99, 100
    srd = lambda n: 's[%d:%d]' % (n, n + 3)
    vr = lambda n, k=4: 'v[%d:%d]' % (n, n + k - 1)
    vLane, vKV, vJunk, vMask, vQ, vAcc, vU, vA, vX = 1, 2, 3, 4, 8, 12, 16, 24, 32
    vWO, vC, vG, vT = 42, 43, 44, 45
    vQs, vQg, vOw, vOr, vOs, vOg, vYg, vMLs, vMLl, vOtag, vCst, vM, vScale, vTag, vYw, vYr = range(48, 64)
    vWb = 64
    vWQ, vWQ2, vXa, vXa2, vL16, vZero = range(96, 102)
    vRing = 256 - 4 * NS
    assert vRing >= 104
    tg = [sT0, sT1, sT0, sT2]

    def tstamp(k):
        if tailst:
            a('s_memrealtime s[%d:%d]' % (sStamp + 2 * k, sStamp + 2 * k + 1))

    def stamp(k):
        if tailst and k in (1, 2, 3, 6):
            return
        if fine:
            if k == 0:
                a('s_memrealtime vcc')
            if k == 5:
                a('s_memrealtime s[12:13]')
        elif stamps:
            a('s_memrealtime s[%d:%d]' % (sStamp + 2 * k, sStamp + 2 * k + 1))

    def fstamp(n):
        if fine and n % 4 == 3:
            a('s_memrealtime s[%d:%d]' % (sStamp + 2 * (n // 4), sStamp + 2 * (n // 4) + 1))

    pos = {'s': [], 'w': [], 'i': []}
    for p, ch in enumerate(order):
        pos[ch].append(p + 10)
    spread = lambda val, ps: sum(((val >> k) & 1) << p for k, p in enumerate(ps))
    cur_off = [None]

    def soff(v):
        if v == 0:
            return '0'
        if cur_off[0] != v:
            a('s_mov_b32 s%d, 0x%x' % (sOff, v))
            cur_off[0] = v
        return 's%d' % sOff

    def kv_load(n):
        off = spread(n % 32, pos['i'])
        s = soff(off - off % 4096)
        a('buffer_load_dwordx4 %s, v%d, %s, %s offen offset:%d%s' %
          (vr(vRing + 4 * (n % NS)), vKV, srd(K if n < 32 else V), s, off % 4096, kvflag), tag=('kv', n))

    def dpp(op, d, s0, s1, ctrl, bank=0xf):
        a('%s_dpp v%d, v%d, v%d %s row_mask:0xf bank_mask:0x%x' % (op, d, s0, s1, ctrl, bank))

    def swap_reduce(op, regs, tmps, which):
        for v, t in zip(regs, tmps):
            a('v_mov_b32 v%d, v%d' % (t, v))
        for v, t in zip(regs, tmps):
            a('v_permlane%d_swap_b32 v%d, v%d' % (which, v, t))
        for v, t in zip(regs, tmps):
            a('%s v%d, v%d, v%d' % (op, v, v, t))

    def fold4(d, p, t):
        dpp('v_add_f32', t, p, p, 'row_ror:8', 0x3)
        dpp('v_add_f32', t, p + 1, p + 1, 'row_ror:8', 0xc)
        dpp('v_add_f32', t + 1, p + 2, p + 2, 'row_ror:8', 0x3)
        dpp('v_add_f32', t + 1, p + 3, p + 3, 'row_ror:8', 0xc)
        dpp('v_add_f32', d, t, t, 'row_shl:4', 0x5)
        dpp('v_add_f32', d, t + 1, t + 1, 'row_shr:4', 0xa)
        dpp('v_add_f32', d, d, d, 'quad_perm:[1,0,3,2]')

    def untag(base, n, acc):
        for j in range(n):
            for k in range(4):
                a('v_xor_b32 v%d, s%d, v%d' % (base + 4 * j + k, tg[k], base + 4 * j + k))
            if j == 0:
                a('v_or3_b32 v%d, v%d, v%d, v%d' % (acc, base, base + 1, base + 2))
                if n == 1:
                    a('v_bitop3_b32 v%d, v%d, v%d, v%d bitop3:0xa8' % (acc, acc, base + 3, vTag))
                else:
                    a('v_or_b32 v%d, v%d, v%d' % (acc, acc, base + 3))
            else:
                a('v_or3_b32 v%d, v%d, v%d, v%d' % (acc, acc, base + 4 * j, base + 4 * j + 1))
                a('v_or3_b32 v%d, v%d, v%d, v%d' % (acc, acc, base + 4 * j + 2, base + 4 * j + 3))
                for k in (0, 2):
                    a('v_pk_add_f32 %s, %s, %s' % (vr(base + k, 2), vr(base + k, 2), vr(base + 4 * j + k, 2)))
        if n > 1:
            a('v_and_b32 v%d, v%d, v%d' % (acc, vTag, acc))

    def spread_s(dst, src, ps, tmp, first):
        k = 0
        while k < len(ps):
            n = 1
            while k + n < len(ps) and ps[k + n] == ps[k] + n:
                n += 1
            if n == len(ps):
                a('s_lshl_b32 s%d, s%d, %d' % (dst if first else tmp, src, ps[k]))
            else:
                a('s_bfe_u32 s%d, s%d, 0x%x' % (tmp, src, (n << 16) | k))
                a('s_lshl_b32 s%d, s%d, %d' % (dst if first else tmp, tmp, ps[k]))
            if not first:
                a('s_add_u32 s%d, s%d, s%d' % (dst, dst, tmp))
            first = False
            k += n

    a('s_cmp_ge_u32 s2, 0x100')
    a('s_cbranch_scc1 L_end')
    a('s_load_dwordx16 s[4:19], s[0:1], 0')
    stamp(0)
    a('v_lshrrev_b32 v%d, 6, v0' % vT)
    a('v_and_b32 v%d, 63, v0' % vLane)
    a('v_readfirstlane_b32 s%d, v%d' % (sW, vT))
    a('s_and_b32 s%d, s2, 7' % sTmp3)
    a('s_lshr_b32 s%d, s2, 6' % sTmp)
    a('s_lshl3_add_u32 s%d, s%d, s%d' % (sH, sTmp, sTmp3))
    a('s_bfe_u32 s%d, s2, 0x10005' % sB)
    a('s_bfe_u32 s%d, s2, 0x20003' % sS)
    a('s_bfe_u32 s%d, s2, 0x30003' % sIdx)
    a('s_lshl_b32 s%d, s%d, 5' % (sKoff, sB))
    a('s_add_u32 s%d, s%d, s%d' % (sKoff, sKoff, sH))
    a('s_lshl_b32 s%d, s%d, 22' % (sKoff, sKoff))
    a('s_add_u32 s%d, s%d, 0x300000' % (sKoff, sKoff))
    spread_s(sTmp, sS, pos['s'], sTmp2, True)
    spread_s(sTmp, sW, pos['w'], sTmp2, False)
    a('v_lshlrev_b32 v%d, 4, v%d' % (vL16, vLane))
    a('v_add_u32 v%d, s%d, v%d' % (vKV, sTmp, vL16))
    a('s_mov_b32 s%d, 0x100000' % (K + 2))
    a('s_mov_b32 s%d, 0x20000' % (K + 3))
    if pre_code:
        a.comment('pull the rest of the code into L2')
        a('s_cmp_gt_u32 s%d, 1' % sW)
        a('s_cbranch_scc1 L_nopre')
        a('s_getpc_b64 s[%d:%d]' % (OUT, OUT + 1))
        a.label('L_pc')
        a('v_lshlrev_b32 v%d, 7, v0' % vJunk)
        a('v_min_u32 v%d, L_end-L_pc, v%d' % (vJunk, vJunk))
        a('global_load_dword v%d, v%d, s[%d:%d]' % (vJunk, vJunk, OUT, OUT + 1))
        a.label('L_nopre')
        a.vm = []
    a('v_and_b32 v%d, 15, v0' % vC)
    a('v_bfe_u32 v%d, v0, 4, 2' % vG)
    a('v_mad_u32_u24 v%d, v%d, 10, v%d' % (vT, vT, vG))
    a('v_lshlrev_b32 v%d, 13, v%d' % (vWQ, vT))
    a('v_lshl_add_u32 v%d, v%d, 4, v%d' % (vWQ, vC, vWQ))
    a('v_lshrrev_b32 v%d, 3, v%d' % (vT + 1, vC))
    a('v_mul_u32_u24 v%d, 1280, v%d' % (vT + 1, vT + 1))
    a('v_lshl_add_u32 v%d, v%d, 1, v%d' % (vXa, vT, vT + 1))
    a('v_lshlrev_b32 v%d, 25, v0' % (vT + 1))
    a('v_and_b32 v%d, 0x%x, v%d' % (vT + 1, OOB, vT + 1))
    a('v_or_b32 v%d, v%d, v%d' % (vWQ2, vWQ, vT + 1))
    a('v_or_b32 v%d, v%d, v%d' % (vXa2, vXa, vT + 1))
    a('s_mul_i32 s%d, s%d, 0x%x' % (sTmp, sTmp3, 80 * 8192))
    a('s_lshr_b32 s%d, s2, 3' % sTmp2)
    a('s_lshl_b32 s%d, s%d, 8' % (sTmp2, sTmp2))
    a('s_add_u32 s%d, s%d, s%d' % (sTmp, sTmp, sTmp2))
    if dbg_lin:
        a('s_mul_i32 s%d, s2, 20480' % sTmp)
        a('s_mul_i32 s%d, s%d, 2560' % (sTmp2, sW))
        a('v_add_u32 v%d, s%d, v%d' % (vWQ, sTmp2, vL16))
        a('v_or_b32 v%d, v%d, v%d' % (vWQ2, vWQ, vT + 1))
    a('s_mul_i32 s%d, s%d, 160' % (sTmp3, sTmp3))
    a('s_mov_b32 s%d, 0x%x' % (WQ + 2, 0 if dbg_noq else 20480 if dbg_lin else 79 * 8192 + 256))
    a('s_mov_b32 s%d, 0x20000' % (WQ + 3))
    a('s_mov_b32 s%d, %d' % (X + 2, 0 if dbg_noq else 2560))
    a('s_mov_b32 s%d, 0x20000' % (X + 3))
    a('v_mov_b32 v%d, 0' % vZero)
    a('v_mov_b32 v%d, %d' % (vT, LDS_F))
    a('ds_write2_b32 v%d, v%d, v%d offset0:0 offset1:1' % (vT, vZero, vZero))
    a('s_waitcnt lgkmcnt(0)')
    a('s_add_u32 s%d, s6, s%d' % (K, sKoff))
    a('s_addc_u32 s%d, s7, 0' % (K + 1))
    cnt = {'w': 0, 'k': 0}
    ready = set()
    for ch in start:
        if ch == 'k':
            kv_load(cnt['k'])
            cnt['k'] += 1
        elif ch == 'x':
            a('s_mov_b32 s%d, s4' % X)
            a('s_mov_b32 s%d, s5' % (X + 1))
            for t in range(3):
                a('buffer_load_ushort v%d, v%d, %s, s%d offen offset:%d' %
                  (vX + t, vXa2 if t == 2 else vXa, srd(X), sTmp3, 8 * t), tag=('x', t))
        else:
            t = cnt['w']
            if t == 0:
                a('s_add_u32 s%d, s10, s%d' % (WQ, sTmp))
                a('s_addc_u32 s%d, s11, 0' % (WQ + 1))
            s = soff(t * (1024 if dbg_lin else 4 * 8192))
            a('buffer_load_dwordx4 %s, v%d, %s, %s offen%s' %
              (vr(vWb + 4 * t), vWQ2 if t == 2 else vWQ, srd(WQ), s, wflag), tag=('wq', t))
            cnt['w'] += 1
    assert cnt['w'] == 3
    a('s_load_dword s%d, s[18:19], 0' % sT)
    stamp(1)
    if fine:
        a('s_mov_b32 s3, vcc_lo')
    a('s_barrier')
    a('v_and_b32 v%d, 1, v0' % vT)
    a('v_lshlrev_b32 v%d, 4, v%d' % (vT, vT))
    a('v_mov_b32 v%d, 0xffff' % (vT + 1))
    a('v_lshlrev_b32 v%d, v%d, v%d' % (vT, vT, vT + 1))
    a('v_bfe_u32 v%d, v0, 1, 2' % (vT + 1))
    for r in range(4):
        a('v_cmp_eq_u32 vcc, %d, v%d' % (r, vT + 1))
        a('v_cndmask_b32 v%d, 0, v%d, vcc' % (vMask + r, vT))
    a('s_add_u32 s%d, s8, s%d' % (V, sKoff))
    a('s_addc_u32 s%d, s9, 0' % (V + 1))
    a('s_mov_b32 s%d, s18' % WS)
    a('s_mov_b32 s%d, s19' % (WS + 1))
    for r_, sz in ((V, 0x100000), (WS, WS_BYTES)):
        a('s_mov_b32 s%d, 0x%x' % (r_ + 2, sz))
        a('s_mov_b32 s%d, 0x20000' % (r_ + 3))
    a('s_mov_b32 s%d, 0x10000' % sSpin)
    a('v_mov_b32 v%d, 0x3ff' % vTag)
    a('v_and_b32 v%d, 0x1f0, v%d' % (vT, vL16))
    a('v_lshrrev_b32 v%d, 5, v%d' % (vT + 1, vLane))
    a('v_lshl_add_u32 v%d, v%d, 12, v%d' % (vT, vT + 1, vT))
    a('s_and_b32 s%d, s2, 0xf8' % sTmp)
    a('s_add_u32 s%d, s%d, s2' % (sTmp, sTmp))
    a('s_lshl_b32 s%d, s%d, 9' % (sTmp, sTmp))
    a('s_add_u32 s%d, s%d, %d' % (sTmp, sTmp, QX_OFF))
    a('v_add_u32 v%d, s%d, v%d' % (vQs, sTmp, vT))

    def make_tags():
        a.comment('hand-off tags of this launch')
        a('s_mul_i32 s%d, s%d, 0x9e3779b1' % (sT, sT))
        a('s_add_u32 s%d, s%d, 0x7f4a7c15' % (sT, sT))
        a('s_and_b32 s%d, s%d, 0x3ff' % (sT0, sT))
        a('s_and_b32 s%d, s%d, 1' % (sTmp, sT))
        a('s_bfe_u32 s%d, s%d, 0x9000a' % (sT1, sT))
        a('s_lshl1_add_u32 s%d, s%d, s%d' % (sT1, sT1, sTmp))
        a('s_bfe_u32 s%d, s%d, 0x90013' % (sT2, sT))
        a('s_lshl1_add_u32 s%d, s%d, s%d' % (sT2, sT2, sTmp))

    def q_partial():
        a.comment('partial q of this wave; the last wave to arrive sums the eight partials and publishes them')
        for t in range(3):
            a('v_lshl_or_b32 v%d, v%d, 16, v%d' % (vX + t, vX + t, vX + t))
        for t in range(3):
            for r in range(4):
                a('v_and_b32 v%d, v%d, v%d' % (vA + 4 * (t & 1) + r, vX + t, vMask + r))
            a('v_mfma_f32_16x16x32_bf16 %s, %s, %s, %s' %
              (vr(vAcc), vr(vA + 4 * (t & 1)), vr(vWb + 4 * t), vr(vAcc) if t else '0'))
        a('v_lshlrev_b32 v%d, 4, v0' % vT)
        a('v_mov_b32 v%d, 1' % (vT + 1))
        a('s_waitcnt lgkmcnt(0)')
        make_tags()
        a('ds_write_b128 v%d, %s offset:%d' % (vT, vr(vAcc), LDS_QP))
        a('s_mov_b64 exec, 1')
        a('ds_add_rtn_u32 v%d, v%d, v%d offset:%d' % (vT + 2, vZero, vT + 1, LDS_F))
        a('s_mov_b64 exec, -1')
        a('s_waitcnt lgkmcnt(0)')
        a('v_readfirstlane_b32 s%d, v%d' % (sTmp2, vT + 2))
        a('s_cmp_lg_u32 s%d, 7' % sTmp2)
        a('s_cbranch_scc1 L_qp_done')
        for w in range(8):
            a('ds_read_b128 %s, v%d offset:%d' % (vr(vWb + 4 * w), vL16, LDS_QP + 1024 * w))
        a('s_waitcnt lgkmcnt(0)')
        for step in (4, 2, 1):
            for w in range(step):
                for k in (0, 2):
                    x0, x1 = vWb + 4 * w + k, vWb + 4 * (w + step) + k
                    a('v_pk_add_f32 %s, %s, %s' % (vr(x0, 2), vr(x0, 2), vr(x1, 2)))
        for k in range(4):
            a('v_bfi_b32 v%d, v%d, s%d, v%d' % (vAcc + k, vTag, tg[k], vWb + k))
        if not dbg_nox:
            a('buffer_store_dwordx4 %s, v%d, %s, 0 offen sc1' % (vr(vAcc), vQs, srd(WS)), tag='qst')
        elif dbg_st is not None:
            a('buffer_store_dwordx4 %s, v%d, %s, 0 offen%s' % (vr(vAcc), vQs, srd(WS), dbg_st), tag='qst')
        a.label('L_qp_done')

    def setup1():
        a.comment('addresses of the q gather, the statistics slots and the output accumulators')
        a('s_lshl1_add_u32 s%d, s%d, s%d' % (sTmp, sH, sB))
        a('s_lshl_b32 s%d, s%d, 12' % (sTmp, sTmp))
        a('s_add_u32 s%d, s%d, %d' % (sTmp, sTmp, QX_OFF))
        a('s_cmp_eq_u32 s%d, %d' % (sW, 9 if dbg_nox and not dbg_g else gw))
        a('s_cselect_b32 s%d, s%d, 0x%x' % (sTmp, sTmp, OOB))
        a('v_add_u32 v%d, s%d, v%d' % (vQg, sTmp, vL16))
        a('s_lshl_b32 s%d, s%d, 10' % (sTmp, sH))
        a('s_add_u32 s%d, s%d, %d' % (sTmp, sTmp, ML_OFF))
        a('s_lshl_b32 s%d, s%d, 9' % (sTmp2, sB))
        a('v_xor_b32 v%d, s%d, v%d' % (vT, sTmp2, vL16))
        a('v_add_u32 v%d, s%d, v%d' % (vMLl, sTmp, vT))
        a('s_lshl3_add_u32 s%d, s%d, s%d' % (sTmp2, sIdx, sW))
        a('s_lshl4_add_u32 s%d, s%d, s%d' % (sTmp, sTmp2, sTmp))
        a('v_mov_b32 v%d, s%d' % (vMLs, sTmp))
        a('s_getreg_b32 s%d, hwreg(HW_REG_XCC_ID, 0, 4)' % sTX)
        a('s_lshl4_add_u32 s%d, s%d, s%d' % (sTX, sT, sTX))
        a('s_mov_b32 s%d, 0x3e0293ee' % sCS)
        a('s_and_b32 s%d, s%d, 0x1ffff' % (sC0, sT))
        a('s_lshl_b32 s%d, s%d, 6' % (sC0, sC0))
        a('s_or_b32 s%d, s%d, 0x4b000000' % (sC0, sC0))
        a('s_lshl_b32 s%d, s%d, 11' % (sTmp, sIdx))
        a('s_add_u32 s%d, s%d, %d' % (sTmp, sTmp, Y_OFF))
        a('v_lshl_add_u32 v%d, v0, 2, s%d' % (vYg, sTmp))
        a('s_lshl3_add_u32 s%d, s%d, s%d' % (sTmp, sH, sIdx))
        a('s_cmp_ge_u32 s%d, 5' % sTmp)
        a('s_cbranch_scc1 L_noinit')
        a('v_mov_b32 v%d, 0' % vA)
        a('v_mov_b32 v%d, s%d' % (vA + 1, sC0))
        a('v_lshl_add_u32 v%d, v%d, 2, v%d' % (vT, vLane, vYg))
        a('s_mov_b32 exec_hi, 0')
        a('buffer_store_dwordx2 %s, v%d, %s, 0 offen sc1' % (vr(vA, 2), vT, srd(WS)), tag='init')
        a('s_mov_b64 exec, -1')
        a.label('L_noinit')

    def setup2():
        a.comment('addresses of the tail')
        a('s_mul_i32 s%d, s%d, %d' % (sTmp, sH, 128 * 1280))
        a('s_add_u32 s%d, s12, s%d' % (WO, sTmp))
        a('s_addc_u32 s%d, s13, 0' % (WO + 1))
        a('s_cmp_lt_u32 s%d, %d' % (sIdx, 0 if dbg_nowo else 5))
        a('s_cselect_b32 s%d, %d, 0' % (WO + 2, 128 * 1280))
        a('s_mov_b32 s%d, 0x20000' % (WO + 3))
        a('s_mov_b32 s%d, s14' % OUT)
        a('s_mov_b32 s%d, s15' % (OUT + 1))
        a('s_mov_b32 s%d, 2560' % (OUT + 2))
        a('s_mov_b32 s%d, 0x20000' % (OUT + 3))
        a('s_mov_b32 s%d, 0xaaaaaaaa' % sOdd)
        a('s_mov_b32 s%d, 0xaaaaaaaa' % (sOdd + 1))
        a('s_mov_b32 s4, 0x11111111')
        a('s_mov_b32 s5, 0x11111111')
        a('v_and_b32 v%d, 1, v%d' % (vT, vG))
        a('v_lshlrev_b32 v%d, 4, v%d' % (vT, vT))
        a('v_lshl_add_u32 v%d, v%d, 5, v%d' % (vT, vC, vT))
        a('s_mul_i32 s%d, s%d, %d' % (sTmp, sW, O_STRIDE))
        a('v_add_u32 v%d, s%d, v%d' % (vOw, sTmp, vT))
        a('v_bfe_u32 v%d, v0, 2, 2' % vT)
        a('v_and_b32 v%d, 1, v0' % (vT + 1))
        a('v_lshl_add_u32 v%d, v%d, 1, v%d' % (vT, vT, vT + 1))
        a('v_lshrrev_b32 v%d, 4, v0' % (vT + 1))
        a('v_mul_u32_u24 v%d, %d, v%d' % (vOr, O_STRIDE, vT))
        a('v_lshl_add_u32 v%d, v%d, 4, v%d' % (vOr, vT + 1, vOr))
        a('v_mul_u32_u24 v%d, 5120, v%d' % (vWO, vT + 1))
        a('v_mul_u32_u24 v%d, %d, v%d' % (vT, Y_STRIDE, vT))
        a('v_bfe_u32 v%d, v0, 1, 1' % (vT + 2))
        a('v_lshl_add_u32 v%d, v%d, 1, v%d' % (vCst, vT + 1, vT + 2))
        a('v_lshl_add_u32 v%d, v%d, 4, v%d' % (vYr, vCst, vT))
        a('s_mul_i32 s%d, s%d, %d' % (sTmp, sW, Y_STRIDE))
        a('v_add_u32 v%d, s%d, v%d' % (vYw, sTmp, vL16))
        a('v_bfe_u32 v%d, v0, 2, 1' % vT)
        a('v_bfe_u32 v%d, v0, 3, 1' % (vT + 1))
        a('v_lshl_add_u32 v%d, v%d, 1, v%d' % (vT + 2, vT, vT + 1))
        a('v_mov_b32 v%d, s%d' % (vOtag, sT0))
        a('v_mov_b32 v%d, s%d' % (vT, sT1))
        a('v_cmp_eq_u32 vcc, 1, v%d' % (vT + 2))
        a('v_cndmask_b32 v%d, v%d, v%d, vcc' % (vOtag, vOtag, vT))
        a('v_mov_b32 v%d, s%d' % (vT, sT2))
        a('v_cmp_eq_u32 vcc, 3, v%d' % (vT + 2))
        a('v_cndmask_b32 v%d, v%d, v%d, vcc' % (vOtag, vOtag, vT))
        a('s_lshl3_add_u32 s%d, s%d, s%d' % (sTmp, sH, sW))
        a('s_lshl_b32 s%d, s%d, 9' % (sTmp, sTmp))
        a('s_add_u32 s%d, s%d, %d' % (sTmp, sTmp, OX_OFF))
        a('v_lshrrev_b32 v%d, 3, v%d' % (vT, vC))
        a('v_and_b32 v%d, 3, v0' % (vT + 1))
        a('v_lshl_add_u32 v%d, v%d, 2, v%d' % (vT, vT, vT + 1))
        a('v_lshl_add_u32 v%d, v%d, 2, v%d' % (vT, vT, vG))
        a('v_lshl_add_u32 v%d, v%d, 4, s%d' % (vOg, vT, sTmp))
        a('s_lshl_b32 s%d, s%d, 6' % (sTmp2, sIdx))
        a('s_add_u32 s%d, s%d, s%d' % (sTmp, sTmp, sTmp2))
        a('v_lshl_add_u32 v%d, v%d, 2, v%d' % (vT, vG, vT + 2))
        a('v_lshl_add_u32 v%d, v%d, 2, s%d' % (vOs, vT, sTmp))
        a('v_lshl_add_u32 v%d, v%d, 4, v%d' % (vWO, vC, vWO))
        a('s_lshl_b32 s%d, s%d, 8' % (sTmp, sIdx))
        a('v_add_u32 v%d, s%d, v%d' % (vWO, sTmp, vWO))
        a('v_and_b32 v%d, 15, v%d' % (vT, vCst))
        a('v_bfe_u32 v%d, v%d, 4, 1' % (vT + 1, vCst))
        a('v_lshl_add_u32 v%d, v%d, 1, v%d' % (vT, vT, vT + 1))
        a('v_lshl_add_u32 v%d, v%d, 2, v%d' % (vT, vT, vT + 2))
        a('s_lshr_b32 s%d, s%d, 2' % (sTmp2, sW))
        a('s_mul_i32 s%d, s%d, 1280' % (sTmp2, sTmp2))
        a('s_add_u32 s%d, s%d, s%d' % (sTmp, sTmp, sTmp2))
        a('v_lshl_add_u32 v%d, v%d, 1, s%d' % (vCst, vT, sTmp))

    vPoll = vX + 4
    vS, vTT = vX, vX + 8
    pend = []
    bank_of = [0, 2, 1, 3]
    st = dict(polled=False, scaled=False, q=False, qg=False, qsum=False, qp=False)
    late = 2 if prescale else 0

    def qgather():
        for j in range(4):
            a('buffer_load_dwordx4 %s, v%d, %s, 0 offen offset:%d sc1' % (vr(vWb + 4 * j), vQg, srd(WS), 1024 * j),
              tag=('qg', j))

    def q_sum():
        a.comment('one wave sums the eight row-block products of this (batch, head) and shares q through LDS')
        a('s_cmp_lg_u32 s%d, %d' % (sW, gw))
        a('s_cbranch_scc1 L_q_skip')
        a.label('L_q_check')
        untag(vWb, 4, vT)
        a('v_cmp_ne_u32 vcc, 0, v%d' % vT)
        if not dbg_nox:
            a('s_cbranch_vccnz L_q_retry')
        a.label('L_q_ok')
        swap_reduce('v_add_f32', range(vWb, vWb + 4), range(vWb + 4, vWb + 8), 32)
        a('v_cvt_pk_bf16_f32 v%d, v%d, v%d' % (vWb, vWb, vWb + 1))
        a('v_cvt_pk_bf16_f32 v%d, v%d, v%d' % (vWb + 1, vWb + 2, vWb + 3))
        a('v_and_b32 v%d, 1, v%d' % (vT, vG))
        a('v_lshl_add_u32 v%d, v%d, 1, v%d' % (vT, vC, vT))
        a('v_lshlrev_b32 v%d, 3, v%d' % (vT, vT))
        a('v_mov_b32 v%d, 1' % (vT + 1))
        a('ds_write_b64 v%d, %s offset:%d' % (vT, vr(vWb, 2), LDS_Q))
        a('ds_write_b32 v%d, v%d offset:%d' % (vZero, vT + 1, LDS_F + 4))
        a.label('L_q_skip')

    def q_read():
        a('v_lshlrev_b32 v%d, 4, v%d' % (vT, vC))
        a.label('L_qr')
        a('ds_read_b32 v%d, v%d offset:%d' % (vT + 1, vZero, LDS_F + 4))
        a('ds_read_b128 %s, v%d offset:%d' % (vr(vQ), vT, LDS_Q))
        a('s_waitcnt lgkmcnt(0)')
        a('v_cmp_eq_u32 vcc, 0, v%d' % (vT + 1))
        a('s_cbranch_vccnz L_qr')
        stamp(2)

    def score(n):
        rb = vRing + 4 * (n % NS)
        s = vS + (n & 7)
        for k in range(4):
            a('v_dot2_f32_bf16 v%d, v%d, v%d, %s' % (s, rb + k, vQ + k, 'v%d' % s if k else '0'))
            if pend and k in (0, 2):
                pend.pop(0)()
        if n % 4 == 3:
            assert not pend
            s0 = vS + (n & 4)
            u = vU + n // 4
            pend.extend([
                lambda: dpp('v_add_f32', vTT, s0, s0, 'row_ror:8', 0x3),
                lambda: dpp('v_add_f32', vTT, s0 + 1, s0 + 1, 'row_ror:8', 0xc),
                lambda: dpp('v_add_f32', vTT + 1, s0 + 2, s0 + 2, 'row_ror:8', 0x3),
                lambda: dpp('v_add_f32', vTT + 1, s0 + 3, s0 + 3, 'row_ror:8', 0xc),
                lambda: dpp('v_add_f32', u, vTT, vTT, 'row_shl:4', 0x5),
                lambda: dpp('v_add_f32', u, vTT + 1, vTT + 1, 'row_shr:4', 0xa),
                lambda: dpp('v_add_f32', u, u, u, 'quad_perm:[1,0,3,2]'),
                lambda: dpp('v_add_f32', u, u, u, 'quad_perm:[2,3,0,1]'),
            ])

    def softmax():
        while pend:
            pend.pop(0)()
        stamp(3)
        a('v_max3_f32 v%d, v%d, v%d, v%d' % (vM, vU, vU + 1, vU + 2))
        a('v_max3_f32 v%d, v%d, v%d, v%d' % (vM, vM, vU + 3, vU + 4))
        a('v_max3_f32 v%d, v%d, v%d, v%d' % (vM, vM, vU + 5, vU + 6))
        a('v_max_f32 v%d, v%d, v%d' % (vM, vM, vU + 7))
        dpp('v_max_f32', vM, vM, vM, 'row_ror:4')
        dpp('v_max_f32', vM, vM, vM, 'row_ror:8')
        swap_reduce('v_max_f32', [vM], [vT], 16)
        swap_reduce('v_max_f32', [vM], [vT], 32)
        a('v_mul_f32 v%d, s%d, v%d' % (vM, sCS, vM))
        for k in range(8):
            a('v_fma_f32 v%d, v%d, s%d, -v%d' % (vU + k, vU + k, sCS, vM))
        for k in range(8):
            a('v_exp_f32 v%d, v%d' % (vU + k, vU + k))
        vML = vX
        a('v_add_f32 v%d, v%d, v%d' % (vML + 2, vU, vU + 1))
        for k in range(2, 8):
            a('v_add_f32 v%d, v%d, v%d' % (vML + 2, vML + 2, vU + k))
        for k in range(8 - late):
            a('v_cvt_pk_bf16_f32 v%d, v%d, v%d' % (vU + k, vU + k, vU + k))
        dpp('v_add_f32', vML + 2, vML + 2, vML + 2, 'row_ror:4')
        a('v_mov_b32 v%d, v%d' % (vML, vM))
        a('v_mov_b32 v%d, s%d' % (vML + 1, sT))
        dpp('v_add_f32', vML + 2, vML + 2, vML + 2, 'row_ror:8')
        a('v_mov_b32 v%d, s%d' % (vML + 3, sTX))
        swap_reduce('v_add_f32', [vML + 2], [vT], 16)
        swap_reduce('v_add_f32', [vML + 2], [vT], 32)
        if not dbg_noml:
            a('s_mov_b64 exec, 1')
            a('buffer_store_dwordx4 %s, v%d, %s, 0 offen sc1' % (vr(vML), vMLs, srd(WS)), tag='mlst')
            a('s_mov_b64 exec, -1')
        build_a(0)

    def build_a(i):
        for r in range(4):
            a('v_and_b32_dpp v%d, v%d, v%d row_newbcast:%d row_mask:0xf bank_mask:0xf' %
              (vA + 4 * (i & 1) + r, vU + i // 4, vMask + r, 4 * bank_of[i % 4]))

    def scale_code():
        a.comment('combine the 32 wave statistics of this (batch, head); compare the dies of the head group')
        a.label('L_ml_check')
        a('v_xor_b32 v%d, s%d, v%d' % (vT, sT, vPoll + 1))
        a('v_xor_b32 v%d, s%d, v%d' % (vT + 1, sTX, vPoll + 3))
        a('v_and_or_b32 v%d, v%d, -16, v%d' % (vT, vT + 1, vT))
        a('v_cmp_ne_u32 vcc, 0, v%d' % vT)
        if not dbg_noml:
            a('s_cbranch_vccnz L_ml_retry')
        a.label('L_ml_ok')
        a('v_cmp_ne_u32 s[%d:%d], 0, v%d' % (sFast, sFast + 1, vZero if dbg_noml else vT + 1))
        vMM = vT + 1
        dpp('v_max_f32', vMM, vPoll, vPoll, 'quad_perm:[1,0,3,2]')
        dpp('v_max_f32', vMM, vMM, vMM, 'quad_perm:[2,3,0,1]')
        dpp('v_max_f32', vMM, vMM, vMM, 'row_ror:4')
        dpp('v_max_f32', vMM, vMM, vMM, 'row_ror:8')
        swap_reduce('v_max_f32', [vMM], [vT], 16)
        a('v_sub_f32 v%d, v%d, v%d' % (vPoll, vPoll, vMM))
        a('v_sub_f32 v%d, v%d, v%d' % (vScale, vM, vMM))
        a('v_exp_f32 v%d, v%d' % (vPoll, vPoll))
        a('v_exp_f32 v%d, v%d' % (vScale, vScale))
        a('v_mul_f32 v%d, v%d, v%d' % (vPoll, vPoll, vPoll + 2))
        dpp('v_add_f32', vPoll, vPoll, vPoll, 'quad_perm:[1,0,3,2]')
        dpp('v_add_f32', vPoll, vPoll, vPoll, 'quad_perm:[2,3,0,1]')
        dpp('v_add_f32', vPoll, vPoll, vPoll, 'row_ror:4')
        dpp('v_add_f32', vPoll, vPoll, vPoll, 'row_ror:8')
        swap_reduce('v_add_f32', [vPoll], [vT], 16)
        a('v_rcp_f32 v%d, v%d' % (vPoll, vPoll))
        a('v_mul_f32 v%d, v%d, v%d' % (vScale, vScale, vPoll))
        a('v_readfirstlane_b32 s%d, v%d' % (sCS, vScale))
        for k in range(8 - late, 8):
            a('v_mul_f32 v%d, s%d, v%d' % (vU + k, sCS, vU + k))
        for k in range(8 - late, 8):
            a('v_cvt_pk_bf16_f32 v%d, v%d, v%d' % (vU + k, vU + k, vU + k))
        st['scaled'] = True

    def scale_acc():
        for r in range(4):
            a('v_mul_f32 v%d, s%d, v%d' % (vAcc + r, sCS, vAcc + r))

    def process(n):
        if n < 32:
            score(n)
            if n == 31:
                softmax()
            return
        i = n - 32
        if st['polled'] and not st['scaled'] and 'poll' not in [t for t, _ in a.vm]:
            scale_code()
        if late and i == 32 - 4 * late:
            scale_acc()
        a('v_mfma_f32_16x16x32_bf16 %s, %s, %s, %s' %
          (vr(vAcc), vr(vA + 4 * (i & 1)), vr(vRing + 4 * (n % NS)), vr(vAcc) if i else '0'))
        if i < 31:
            assert st['scaled'] or i + 1 < 32 - 4 * late
            build_a(i + 1)

    def inflight(tag):
        return tag in [t for t, _ in a.vm]

    Fs = Fs or {}
    issued, done, landed = cnt['k'], 0, 0
    while done < 64:
        if landed < 64:
            assert landed < issued
            a.wait_vm(('kv', landed))
            fstamp(landed)
            landed += 1
        while issued < 64 and issued - landed < Fs.get(issued, F):
            assert issued - done < NS
            if issued == gather_at:
                qgather()
                st['qg'] = True
            if issued == poll_at:
                assert done > 32
                if pre_ox:
                    a('buffer_load_dword v%d, v%d, %s, 0 offen sc1' % (vJunk, vOg, srd(WS)), tag='preox')
                if not dbg_noml:
                    a('buffer_load_dwordx4 %s, v%d, %s, 0 offen sc1' % (vr(vPoll), vMLl, srd(WS)), tag='poll')
                st['polled'] = True
            kv_load(issued)
            issued += 1
            if issued == setup_at[0]:
                assert st['qp']
                setup1()
            if issued == setup_at[1]:
                setup2()
        for t in range(4):
            if wo_land[t] == landed and ('wo', t) not in a.issued:
                a('buffer_load_dwordx4 %s, v%d, %s, 0 offen offset:%d%s' %
                  (vr(vWb + 4 * t), vWO, srd(WO), 1280 * t, wflag), tag=('wo', t))
        if not st['qp'] and not inflight(('wq', 2)) and not inflight(('x', 2)):
            q_partial()
            st['qp'] = True
        if st['qg'] and not st['qsum'] and not inflight(('qg', 3)):
            q_sum()
            st['qsum'] = True
        if not st['q']:
            if st['qsum'] and issued >= q_at:
                q_read()
                st['q'] = True
            continue
        for _ in range(catch):
            if done < landed:
                process(done)
                done += 1
    assert st['scaled']
    stamp(4)

    a('s_mov_b32 exec_hi, 0')
    a('s_cmp_eq_u64 s[%d:%d], 0' % (sFast, sFast + 1))
    if not late:
        scale_acc()
    a('ds_write_b128 v%d, %s offset:%d' % (vOw, vr(vAcc), LDS_O))
    a('s_mov_b64 exec, -1')
    a('s_waitcnt lgkmcnt(0)')
    a('s_barrier')
    vO = vU
    a('ds_read_b128 %s, v%d offset:%d' % (vr(vO), vOr, LDS_O))
    a('s_waitcnt lgkmcnt(0)')
    fold4(vO + 4, vO, vT)
    a('s_mov_b64 exec, s[4:5]')
    a('v_bfi_b32 v%d, v%d, v%d, v%d' % (vO + 4, vTag, vOtag, vO + 4))
    if fast:
        a('s_cbranch_scc0 L_o_far')
        a('buffer_store_dword v%d, v%d, %s, 0 offen' % (vO + 4, vOs, srd(WS)))
        a.label('L_o_sent')
    else:
        a('buffer_store_dword v%d, v%d, %s, 0 offen sc1' % (vO + 4, vOs, srd(WS)))
    for k in (1, 2, 3, 6):
        tstamp(k)
    a('s_mov_b64 exec, -1')
    a('s_cmp_ge_u32 s%d, 5' % sIdx)
    a('s_cbranch_scc1 L_not_proj')
    vP = vRing
    vPp = vRing + 32
    oload = lambda j: a('buffer_load_dwordx4 %s, v%d, %s, 0 offen sc1' % (vr(vPp + 4 * j), vOg, srd(WS)))
    for j in range(npoll - 1):
        oload(j)
        if pgap:
            a('s_sleep %d' % pgap)
    a.label('L_o_poll')
    for j in range(npoll):
        oload((j + npoll - 1) % npoll)
        a('s_waitcnt vmcnt(%d)' % (npoll - 1))
        b = vPp + 4 * j
        untag(b, 1, vT)
        for t in range(4):
            dpp('v_add_f32', vP + t, b + t, b + t, 'quad_perm:[1,0,3,2]')
            if t == 0:
                a('v_cmp_ne_u32 vcc, 0, v%d' % vT)
        if j < npoll - 1:
            a('s_cbranch_vccz L_o_ok')
        else:
            a('s_cbranch_vccnz L_o_retry')
    a.vm = []
    a.label('L_o_ok')
    tstamp(3)
    for t in range(4):
        dpp('v_add_f32', vP + t, vP + t, vP + t, 'quad_perm:[2,3,0,1]')
    for t in range(4):
        a('v_cvt_pk_bf16_f32 v%d, v%d, v%d' % (vP + t, vP + t, vP + t))
    vA2 = vRing + 4
    for t in range(4):
        for r in range(4):
            a('v_and_b32 v%d, v%d, v%d' % (vA2 + 4 * t + r, vP + t, vMask + r))
            if t and r == 1:
                a('v_mfma_f32_16x16x32_bf16 %s, %s, %s, %s' %
                  (vr(vAcc), vr(vA2 + 4 * t - 4), vr(vWb + 4 * t - 4), vr(vAcc) if t > 1 else '0'))
    a('v_mfma_f32_16x16x32_bf16 %s, %s, %s, %s' % (vr(vAcc), vr(vA2 + 12), vr(vWb + 12), vr(vAcc)))
    a('ds_write_b128 v%d, %s offset:%d' % (vYw, vr(vAcc), LDS_Y))
    a('s_waitcnt lgkmcnt(0)')
    a('s_barrier')
    tstamp(6)
    a('ds_read_b128 %s, v%d offset:%d' % (vr(vP), vYr, LDS_Y))
    a('s_waitcnt lgkmcnt(0)')
    vY, vR = vP + 4, vP + 5
    fold4(vY, vP, vT)
    sO = 's[%d:%d]' % (sOdd, sOdd + 1)
    a.label('L_acc')
    a('v_cndmask_b32 v%d, v%d, 1.0, %s' % (vR, vY, sO))
    a('buffer_atomic_add_f32 v%d, v%d, %s, 0 offen sc0' % (vR, vYg, srd(WS)))
    tstamp(2)
    a('s_waitcnt vmcnt(0)')
    a('v_subrev_u32 v%d, s%d, v%d' % (vT, sC0, vR))
    a('v_add_f32 v%d, v%d, v%d' % (vR, vR, vY))
    a('v_cmp_eq_u32 vcc, 31, v%d' % vT)
    a('v_cmp_lt_u32 s[8:9], 31, v%d' % vT)
    a('v_cvt_pk_bf16_f32 v%d, v%d, v%d' % (vR, vR, vR))
    a('s_and_b64 vcc, vcc, %s' % sO)
    a('s_lshr_b64 exec, vcc, 1')
    a('s_cbranch_execz L_acc_done')
    a('buffer_store_short v%d, v%d, %s, 0 offen' % (vR, vCst, srd(OUT)))
    a.label('L_acc_done')
    a('s_and_b64 exec, s[8:9], %s' % sO)
    a('s_cbranch_execnz L_acc_early')
    if stamps:
        a('s_mov_b64 exec, -1')
        a('s_branch L_fin')
    else:
        a('s_endpgm')
    a.label('L_acc_early')
    a('buffer_load_dword v%d, v%d, %s, 0 offen sc1' % (vR, vYg, srd(WS)))
    a('s_waitcnt vmcnt(0)')
    a('v_subrev_u32 v%d, s%d, v%d' % (vT, sC0, vR))
    a('v_cmp_lt_u32 vcc, 31, v%d' % vT)
    a('s_sub_u32 s%d, s%d, 1' % (sSpin, sSpin))
    a('s_cbranch_scc1 L_end')
    a('s_cbranch_vccnz L_acc_early')
    a('s_lshr_b64 s[8:9], exec, 1')
    a('s_or_b64 exec, exec, s[8:9]')
    a('s_branch L_acc')
    a.label('L_o_retry')
    if osleep:
        a('s_sleep %d' % osleep)
    a('s_sub_u32 s%d, s%d, 1' % (sSpin, sSpin))
    a('s_cbranch_scc0 L_o_poll')
    a('s_branch L_o_ok')
    if fast:
        a.label('L_o_far')
        a('buffer_store_dword v%d, v%d, %s, 0 offen sc1' % (vO + 4, vOs, srd(WS)))
        a('s_branch L_o_sent')

    a.label('L_ml_retry')
    a('s_sub_u32 s%d, s%d, 1' % (sSpin, sSpin))
    a('s_cbranch_scc1 L_ml_ok')
    a('buffer_load_dwordx4 %s, v%d, %s, 0 offen sc1' % (vr(vPoll), vMLl, srd(WS)))
    a('s_waitcnt vmcnt(0)')
    a('s_branch L_ml_check')

    a.label('L_q_retry')
    a('s_sub_u32 s%d, s%d, 1' % (sSpin, sSpin))
    a('s_cbranch_scc1 L_q_ok')
    qgather()
    a('s_waitcnt vmcnt(0)')
    a('s_branch L_q_check')

    a.label('L_not_proj')
    a('s_lshl3_add_u32 s%d, s2, s%d' % (sTmp, sW))
    a('s_cmp_lg_u32 s%d, 0x7f8' % sTmp)
    a('s_cbranch_scc1 L_fin')
    a('v_lshlrev_b32 v%d, 9, v%d' % (vT + 1, vLane))
    a('v_and_b32 v%d, 0x7000, v%d' % (vT, vT + 1))
    a('v_add_u32 v%d, v%d, v%d' % (vT + 1, vT + 1, vT))
    a.label('L_ep_poll')
    for n in range(4):
        a('s_mov_b32 s4, %d' % (QX_OFF + 65536 * n))
        a('buffer_load_dwordx4 %s, v%d, %s, s4 offen sc1' % (vr(vP + 4 * n), vT + 1, srd(WS)))
    a('s_waitcnt vmcnt(0)')
    untag(vP, 4, vT)
    a('v_cmp_ne_u32 vcc, 0, v%d' % vT)
    a('s_cbranch_vccz L_ep_ok')
    if not dbg_nox:
        a('s_sub_u32 s%d, s%d, 1' % (sSpin, sSpin))
        a('s_cbranch_scc0 L_ep_poll')
    a.label('L_ep_ok')
    a('v_mov_b32 v%d, s%d' % (vT, sT))
    a('s_mov_b64 exec, 1')
    a('buffer_store_dword v%d, v%d, %s, 0 offen sc1' % (vT, vZero, srd(WS)))
    a('s_mov_b64 exec, -1')
    a.label('L_fin')
    if stamps:
        stamp(5)
        a('s_waitcnt vmcnt(0)')
        stamp(6)
        if fine:
            regs, sh = [3, 12, 12, 14, sSpin] + [sStamp + 2 * j for j in range(16)], 7
            a('s_getreg_b32 s14, hwreg(HW_REG_XCC_ID)')
        else:
            regs, sh = [sStamp + k for k in range(16)], 6
            a('s_getreg_b32 s%d, hwreg(HW_REG_XCC_ID)' % (sStamp + 14))
            a('s_mov_b32 s%d, s%d' % (sStamp + 15, sSpin))
        a('s_waitcnt lgkmcnt(0)')
        a('v_mov_b32 v%d, 0' % vT)
        for k, r in enumerate(regs):
            a('v_writelane_b32 v%d, s%d, %d' % (vT, r, k))
        a('s_lshl3_add_u32 s%d, s2, s%d' % (sTmp, sW))
        a('s_lshl_b32 s%d, s%d, %d' % (sTmp, sTmp, sh))
        a('s_add_u32 s%d, s%d, 0x%x' % (sTmp, sTmp, STAMP_OFF))
        a('v_lshlrev_b32 v%d, 2, v%d' % (vT + 1, vLane))
        a('s_mov_b32 exec_hi, 0')
        if not fine:
            a('s_mov_b32 exec_lo, 0xffff')
        a('buffer_store_dword v%d, v%d, %s, s%d offen' % (vT, vT + 1, srd(WS), sTmp))
    a.label('L_end')
    a('s_endpgm')

    out = HEADER
    out += '; @launch grid=(256,1,1) block=(512,1,1) lds=%d\n' % LDS_BYTES
    out += '.amdgcn_target "amdgcn-amd-amdhsa--gfx950"\n.text\n.globl %s_kernel\n.p2align 8\n' % NAME
    out += '.type %s_kernel,@function\n%s_kernel:\n' % (NAME, NAME)
    out += a.text()
    out += '''.section .rodata,"a"
.p2align 6
.amdhsa_kernel %s_kernel
  .amdhsa_next_free_vgpr 256
  .amdhsa_next_free_sgpr 102
  .amdhsa_accum_offset 256
  .amdhsa_group_segment_fixed_size 0
  .amdhsa_kernarg_size 64
  .amdhsa_user_sgpr_count 2
  .amdhsa_user_sgpr_kernarg_segment_ptr 1
  .amdhsa_system_sgpr_workgroup_id_x 1
  .amdhsa_float_denorm_mode_32 3
.end_amdhsa_kernel
''' % NAME
    return out


if __name__ == '__main__':
    kw = {}
    for arg in sys.argv[2:]:
        k, v = arg.split('=', 1)
        kw[k] = eval(v)
    text = gen(**kw)
    open(sys.argv[1], 'w').write(text)
```

```python
import sys
from asmlib import Asm
from gen2 import HEADER, NAME

ML_OFF = 4096
QX_OFF = 64 << 10
OX_OFF = 384 << 10
Y_OFF = 512 << 10
STAMP_OFF = 1 << 22
O_STRIDE = 544
Y_STRIDE = 1088
LDS_O, LDS_Y, LDS_QP, LDS_Q, LDS_F = 0, 4352, 13056, 21248, 21504
LDS_BYTES = 22016
OOB = 0x40000000


def gen(F=4, NS=32, order='iiwwwssiii', kvflag=' nt', wflag=' nt', start='kxwwwk', Fs=None, gather_at=16,
        q_at=23, catch=4, poll_at=50, wo_land=(60, 61, 62, 63), gw=0, fast=True, pre_code=True, pre_ox=False,
        npoll=1, pgap=2, prescale=True, setup_at=(8, 12), stamps=False, tailst=False, fine=False,
        dbg_noq=False, dbg_nowo=False, dbg_nox=False, dbg_lin=False, osleep=0, pre_v=None, pre_wo=None, pre_out=None, dbg_st=None, dbg_g=False, dbg_noml=False):
    a = Asm()
    stamps |= tailst or fine
    dbg_nox |= dbg_noq
    WS_BYTES = (STAMP_OFF + 256 * 8 * 128) if stamps else (1 << 20)
    sW, sH, sB, sS = 20, 21, 22, 23
    K, V, WQ, WO, X, WS, OUT = 24, 28, 32, 36, 40, 44, 48
    sOff, sT, sT0, sT1, sT2, sCS, sSpin, sTmp, sTmp2, sIdx, sKoff, sTmp3 = range(52, 64)
    sOdd = 64
    sStamp = 66
    sTX, sC0, sFast = 98, 99, 100
    srd = lambda n: 's[%d:%d]' % (n, n + 3)
    vr = lambda n, k=4: 'v[%d:%d]' % (n, n + k - 1)
    vLane, vKV, vJunk, vMask, vQ, vAcc, vU, vA, vX = 1, 2, 3, 4, 8, 12, 16, 24, 32
    vWO, vC, vG, vT = 42, 43, 44, 45
    vQs, vQg, vOw, vOr, vOs, vOg, vYg, vMLs, vMLl, vOtag, vCst, vM, vScale, vTag, vYw, vYr = range(48, 64)
    vWb = 64
    vWQ, vWQ2, vXa, vXa2, vL16, vZero = range(96, 102)
    vRing = 256 - 4 * NS
    assert vRing >= 104
    tg = [sT0, sT1, sT0, sT2]

    def tstamp(k):
        if tailst:
            a('s_memrealtime s[%d:%d]' % (sStamp + 2 * k, sStamp + 2 * k + 1))

    def stamp(k):
        if tailst and k in (1, 2, 3, 6):
            return
        if fine:
            if k == 0:
                a('s_memrealtime vcc')
            if k == 5:
                a('s_memrealtime s[12:13]')
        elif stamps:
            a('s_memrealtime s[%d:%d]' % (sStamp + 2 * k, sStamp + 2 * k + 1))

    def fstamp(n):
        if fine and n % 4 == 3:
            a('s_memrealtime s[%d:%d]' % (sStamp + 2 * (n // 4), sStamp + 2 * (n // 4) + 1))

    pos = {'s': [], 'w': [], 'i': []}
    for p, ch in enumerate(order):
        pos[ch].append(p + 10)
    spread = lambda val, ps: sum(((val >> k) & 1) << p for k, p in enumerate(ps))
    cur_off = [None]

    def soff(v):
        if v == 0:
            return '0'
        if cur_off[0] != v:
            a('s_mov_b32 s%d, 0x%x' % (sOff, v))
            cur_off[0] = v
        return 's%d' % sOff

    def kv_load(n):
        off = spread(n % 32, pos['i'])
        s = soff(off - off % 4096)
        a('buffer_load_dwordx4 %s, v%d, %s, %s offen offset:%d%s' %
          (vr(vRing + 4 * (n % NS)), vKV, srd(K if n < 32 else V), s, off % 4096, kvflag), tag=('kv', n))

    def dpp(op, d, s0, s1, ctrl, bank=0xf):
        a('%s_dpp v%d, v%d, v%d %s row_mask:0xf bank_mask:0x%x' % (op, d, s0, s1, ctrl, bank))

    def swap_reduce(op, regs, tmps, which):
        for v, t in zip(regs, tmps):
            a('v_mov_b32 v%d, v%d' % (t, v))
        for v, t in zip(regs, tmps):
            a('v_permlane%d_swap_b32 v%d, v%d' % (which, v, t))
        for v, t in zip(regs, tmps):
            a('%s v%d, v%d, v%d' % (op, v, v, t))

    def fold4(d, p, t):
        dpp('v_add_f32', t, p, p, 'row_ror:8', 0x3)
        dpp('v_add_f32', t, p + 1, p + 1, 'row_ror:8', 0xc)
        dpp('v_add_f32', t + 1, p + 2, p + 2, 'row_ror:8', 0x3)
        dpp('v_add_f32', t + 1, p + 3, p + 3, 'row_ror:8', 0xc)
        dpp('v_add_f32', d, t, t, 'row_shl:4', 0x5)
        dpp('v_add_f32', d, t + 1, t + 1, 'row_shr:4', 0xa)
        dpp('v_add_f32', d, d, d, 'quad_perm:[1,0,3,2]')

    def untag(base, n, acc):
        for j in range(n):
            for k in range(4):
                a('v_xor_b32 v%d, s%d, v%d' % (base + 4 * j + k, tg[k], base + 4 * j + k))
            if j == 0:
                a('v_or3_b32 v%d, v%d, v%d, v%d' % (acc, base, base + 1, base + 2))
                if n == 1:
                    a('v_bitop3_b32 v%d, v%d, v%d, v%d bitop3:0xa8' % (acc, acc, base + 3, vTag))
                else:
                    a('v_or_b32 v%d, v%d, v%d' % (acc, acc, base + 3))
            else:
                a('v_or3_b32 v%d, v%d, v%d, v%d' % (acc, acc, base + 4 * j, base + 4 * j + 1))
                a('v_or3_b32 v%d, v%d, v%d, v%d' % (acc, acc, base + 4 * j + 2, base + 4 * j + 3))
                for k in (0, 2):
                    a('v_pk_add_f32 %s, %s, %s' % (vr(base + k, 2), vr(base + k, 2), vr(base + 4 * j + k, 2)))
        if n > 1:
            a('v_and_b32 v%d, v%d, v%d' % (acc, vTag, acc))

    def spread_s(dst, src, ps, tmp, first):
        k = 0
        while k < len(ps):
            n = 1
            while k + n < len(ps) and ps[k + n] == ps[k] + n:
                n += 1
            if n == len(ps):
                a('s_lshl_b32 s%d, s%d, %d' % (dst if first else tmp, src, ps[k]))
            else:
                a('s_bfe_u32 s%d, s%d, 0x%x' % (tmp, src, (n << 16) | k))
                a('s_lshl_b32 s%d, s%d, %d' % (dst if first else tmp, tmp, ps[k]))
            if not first:
                a('s_add_u32 s%d, s%d, s%d' % (dst, dst, tmp))
            first = False
            k += n

    a('s_cmp_ge_u32 s2, 0x100')
    a('s_cbranch_scc1 L_end')
    a('s_load_dwordx16 s[4:19], s[0:1], 0')
    stamp(0)
    a('v_lshrrev_b32 v%d, 6, v0' % vT)
    a('v_and_b32 v%d, 63, v0' % vLane)
    a('v_readfirstlane_b32 s%d, v%d' % (sW, vT))
    a('s_and_b32 s%d, s2, 7' % sTmp3)
    a('s_lshr_b32 s%d, s2, 6' % sTmp)
    a('s_lshl3_add_u32 s%d, s%d, s%d' % (sH, sTmp, sTmp3))
    a('s_bfe_u32 s%d, s2, 0x10005' % sB)
    a('s_bfe_u32 s%d, s2, 0x20003' % sS)
    a('s_bfe_u32 s%d, s2, 0x30003' % sIdx)
    a('s_lshl_b32 s%d, s%d, 5' % (sKoff, sB))
    a('s_add_u32 s%d, s%d, s%d' % (sKoff, sKoff, sH))
    a('s_lshl_b32 s%d, s%d, 22' % (sKoff, sKoff))
    a('s_add_u32 s%d, s%d, 0x300000' % (sKoff, sKoff))
    spread_s(sTmp, sS, pos['s'], sTmp2, True)
    spread_s(sTmp, sW, pos['w'], sTmp2, False)
    a('v_lshlrev_b32 v%d, 4, v%d' % (vL16, vLane))
    a('v_add_u32 v%d, s%d, v%d' % (vKV, sTmp, vL16))
    a('s_mov_b32 s%d, 0x100000' % (K + 2))
    a('s_mov_b32 s%d, 0x20000' % (K + 3))
    if pre_code:
        a.comment('pull the rest of the code into L2')
        a('s_cmp_gt_u32 s%d, 1' % sW)
        a('s_cbranch_scc1 L_nopre')
        a('s_getpc_b64 s[%d:%d]' % (OUT, OUT + 1))
        a.label('L_pc')
        a('v_lshlrev_b32 v%d, 7, v0' % vJunk)
        a('v_min_u32 v%d, L_end-L_pc, v%d' % (vJunk, vJunk))
        a('global_load_dword v%d, v%d, s[%d:%d]' % (vJunk, vJunk, OUT, OUT + 1))
        a.label('L_nopre')
        a.vm = []
    a('v_and_b32 v%d, 15, v0' % vC)
    a('v_bfe_u32 v%d, v0, 4, 2' % vG)
    a('v_mad_u32_u24 v%d, v%d, 10, v%d' % (vT, vT, vG))
    a('v_lshlrev_b32 v%d, 13, v%d' % (vWQ, vT))
    a('v_lshl_add_u32 v%d, v%d, 4, v%d' % (vWQ, vC, vWQ))
    a('v_lshrrev_b32 v%d, 3, v%d' % (vT + 1, vC))
    a('v_mul_u32_u24 v%d, 1280, v%d' % (vT + 1, vT + 1))
    a('v_lshl_add_u32 v%d, v%d, 1, v%d' % (vXa, vT, vT + 1))
    a('v_lshlrev_b32 v%d, 25, v0' % (vT + 1))
    a('v_and_b32 v%d, 0x%x, v%d' % (vT + 1, OOB, vT + 1))
    a('v_or_b32 v%d, v%d, v%d' % (vWQ2, vWQ, vT + 1))
    a('v_or_b32 v%d, v%d, v%d' % (vXa2, vXa, vT + 1))
    a('s_mul_i32 s%d, s%d, 0x%x' % (sTmp, sTmp3, 80 * 8192))
    a('s_lshr_b32 s%d, s2, 3' % sTmp2)
    a('s_lshl_b32 s%d, s%d, 8' % (sTmp2, sTmp2))
    a('s_add_u32 s%d, s%d, s%d' % (sTmp, sTmp, sTmp2))
    if dbg_lin:
        a('s_mul_i32 s%d, s2, 20480' % sTmp)
        a('s_mul_i32 s%d, s%d, 2560' % (sTmp2, sW))
        a('v_add_u32 v%d, s%d, v%d' % (vWQ, sTmp2, vL16))
        a('v_or_b32 v%d, v%d, v%d' % (vWQ2, vWQ, vT + 1))
    a('s_mul_i32 s%d, s%d, 160' % (sTmp3, sTmp3))
    a('s_mov_b32 s%d, 0x%x' % (WQ + 2, 0 if dbg_noq else 20480 if dbg_lin else 79 * 8192 + 256))
    a('s_mov_b32 s%d, 0x20000' % (WQ + 3))
    a('s_mov_b32 s%d, %d' % (X + 2, 0 if dbg_noq else 2560))
    a('s_mov_b32 s%d, 0x20000' % (X + 3))
    a('v_mov_b32 v%d, 0' % vZero)
    a('v_mov_b32 v%d, %d' % (vT, LDS_F))
    a('ds_write2_b32 v%d, v%d, v%d offset0:0 offset1:1' % (vT, vZero, vZero))
    a('s_waitcnt lgkmcnt(0)')
    a('s_add_u32 s%d, s6, s%d' % (K, sKoff))
    a('s_addc_u32 s%d, s7, 0' % (K + 1))
    cnt = {'w': 0, 'k': 0}
    ready = set()
    for ch in start:
        if ch == 'k':
            kv_load(cnt['k'])
            cnt['k'] += 1
        elif ch == 'x':
            a('s_mov_b32 s%d, s4' % X)
            a('s_mov_b32 s%d, s5' % (X + 1))
            for t in range(3):
                a('buffer_load_ushort v%d, v%d, %s, s%d offen offset:%d' %
                  (vX + t, vXa2 if t == 2 else vXa, srd(X), sTmp3, 8 * t), tag=('x', t))
        else:
            t = cnt['w']
            if t == 0:
                a('s_add_u32 s%d, s10, s%d' % (WQ, sTmp))
                a('s_addc_u32 s%d, s11, 0' % (WQ + 1))
            s = soff(t * (1024 if dbg_lin else 4 * 8192))
            a('buffer_load_dwordx4 %s, v%d, %s, %s offen%s' %
              (vr(vWb + 4 * t), vWQ2 if t == 2 else vWQ, srd(WQ), s, wflag), tag=('wq', t))
            cnt['w'] += 1
    assert cnt['w'] == 3
    a('s_load_dword s%d, s[18:19], 0' % sT)
    stamp(1)
    if fine:
        a('s_mov_b32 s3, vcc_lo')
    a('s_barrier')
    a('v_and_b32 v%d, 1, v0' % vT)
    a('v_lshlrev_b32 v%d, 4, v%d' % (vT, vT))
    a('v_mov_b32 v%d, 0xffff' % (vT + 1))
    a('v_lshlrev_b32 v%d, v%d, v%d' % (vT, vT, vT + 1))
    a('v_bfe_u32 v%d, v0, 1, 2' % (vT + 1))
    for r in range(4):
        a('v_cmp_eq_u32 vcc, %d, v%d' % (r, vT + 1))
        a('v_cndmask_b32 v%d, 0, v%d, vcc' % (vMask + r, vT))
    a('s_add_u32 s%d, s8, s%d' % (V, sKoff))
    a('s_addc_u32 s%d, s9, 0' % (V + 1))
    a('s_mov_b32 s%d, s18' % WS)
    a('s_mov_b32 s%d, s19' % (WS + 1))
    for r_, sz in ((V, 0x100000), (WS, WS_BYTES)):
        a('s_mov_b32 s%d, 0x%x' % (r_ + 2, sz))
        a('s_mov_b32 s%d, 0x20000' % (r_ + 3))
    a('s_mov_b32 s%d, 0x10000' % sSpin)
    a('v_mov_b32 v%d, 0x3ff' % vTag)
    a('v_and_b32 v%d, 0x1f0, v%d' % (vT, vL16))
    a('v_lshrrev_b32 v%d, 5, v%d' % (vT + 1, vLane))
    a('v_lshl_add_u32 v%d, v%d, 12, v%d' % (vT, vT + 1, vT))
    a('s_and_b32 s%d, s2, 0xf8' % sTmp)
    a('s_add_u32 s%d, s%d, s2' % (sTmp, sTmp))
    a('s_lshl_b32 s%d, s%d, 9' % (sTmp, sTmp))
    a('s_add_u32 s%d, s%d, %d' % (sTmp, sTmp, QX_OFF))
    a('v_add_u32 v%d, s%d, v%d' % (vQs, sTmp, vT))

    def make_tags():
        a.comment('hand-off tags of this launch')
        a('s_mul_i32 s%d, s%d, 0x9e3779b1' % (sT, sT))
        a('s_add_u32 s%d, s%d, 0x7f4a7c15' % (sT, sT))
        a('s_and_b32 s%d, s%d, 0x3ff' % (sT0, sT))
        a('s_and_b32 s%d, s%d, 1' % (sTmp, sT))
        a('s_bfe_u32 s%d, s%d, 0x9000a' % (sT1, sT))
        a('s_lshl1_add_u32 s%d, s%d, s%d' % (sT1, sT1, sTmp))
        a('s_bfe_u32 s%d, s%d, 0x90013' % (sT2, sT))
        a('s_lshl1_add_u32 s%d, s%d, s%d' % (sT2, sT2, sTmp))

    def q_partial():
        a.comment('partial q of this wave; the last wave to arrive sums the eight partials and publishes them')
        for t in range(3):
            a('v_lshl_or_b32 v%d, v%d, 16, v%d' % (vX + t, vX + t, vX + t))
        for t in range(3):
            for r in range(4):
                a('v_and_b32 v%d, v%d, v%d' % (vA + 4 * (t & 1) + r, vX + t, vMask + r))
            a('v_mfma_f32_16x16x32_bf16 %s, %s, %s, %s' %
              (vr(vAcc), vr(vA + 4 * (t & 1)), vr(vWb + 4 * t), vr(vAcc) if t else '0'))
        a('v_lshlrev_b32 v%d, 4, v0' % vT)
        a('v_mov_b32 v%d, 1' % (vT + 1))
        a('s_waitcnt lgkmcnt(0)')
        make_tags()
        a('ds_write_b128 v%d, %s offset:%d' % (vT, vr(vAcc), LDS_QP))
        a('s_mov_b64 exec, 1')
        a('ds_add_rtn_u32 v%d, v%d, v%d offset:%d' % (vT + 2, vZero, vT + 1, LDS_F))
        a('s_mov_b64 exec, -1')
        a('s_waitcnt lgkmcnt(0)')
        a('v_readfirstlane_b32 s%d, v%d' % (sTmp2, vT + 2))
        a('s_cmp_lg_u32 s%d, 7' % sTmp2)
        a('s_cbranch_scc1 L_qp_done')
        for w in range(8):
            a('ds_read_b128 %s, v%d offset:%d' % (vr(vWb + 4 * w), vL16, LDS_QP + 1024 * w))
        a('s_waitcnt lgkmcnt(0)')
        for step in (4, 2, 1):
            for w in range(step):
                for k in (0, 2):
                    x0, x1 = vWb + 4 * w + k, vWb + 4 * (w + step) + k
                    a('v_pk_add_f32 %s, %s, %s' % (vr(x0, 2), vr(x0, 2), vr(x1, 2)))
        for k in range(4):
            a('v_bfi_b32 v%d, v%d, s%d, v%d' % (vAcc + k, vTag, tg[k], vWb + k))
        if not dbg_nox:
            a('buffer_store_dwordx4 %s, v%d, %s, 0 offen sc1' % (vr(vAcc), vQs, srd(WS)), tag='qst')
        elif dbg_st is not None:
            a('buffer_store_dwordx4 %s, v%d, %s, 0 offen%s' % (vr(vAcc), vQs, srd(WS), dbg_st), tag='qst')
        a.label('L_qp_done')

    def setup1():
        a.comment('addresses of the q gather, the statistics slots and the output accumulators')
        a('s_lshl1_add_u32 s%d, s%d, s%d' % (sTmp, sH, sB))
        a('s_lshl_b32 s%d, s%d, 12' % (sTmp, sTmp))
        a('s_add_u32 s%d, s%d, %d' % (sTmp, sTmp, QX_OFF))
        a('s_cmp_eq_u32 s%d, %d' % (sW, 9 if dbg_nox and not dbg_g else gw))
        a('s_cselect_b32 s%d, s%d, 0x%x' % (sTmp, sTmp, OOB))
        a('v_add_u32 v%d, s%d, v%d' % (vQg, sTmp, vL16))
        a('s_lshl_b32 s%d, s%d, 10' % (sTmp, sH))
        a('s_add_u32 s%d, s%d, %d' % (sTmp, sTmp, ML_OFF))
        a('s_lshl_b32 s%d, s%d, 9' % (sTmp2, sB))
        a('v_xor_b32 v%d, s%d, v%d' % (vT, sTmp2, vL16))
        a('v_add_u32 v%d, s%d, v%d' % (vMLl, sTmp, vT))
        a('s_lshl3_add_u32 s%d, s%d, s%d' % (sTmp2, sIdx, sW))
        a('s_lshl4_add_u32 s%d, s%d, s%d' % (sTmp, sTmp2, sTmp))
        a('v_mov_b32 v%d, s%d' % (vMLs, sTmp))
        a('s_getreg_b32 s%d, hwreg(HW_REG_XCC_ID, 0, 4)' % sTX)
        a('s_lshl4_add_u32 s%d, s%d, s%d' % (sTX, sT, sTX))
        a('s_mov_b32 s%d, 0x3e0293ee' % sCS)
        a('s_and_b32 s%d, s%d, 0x1ffff' % (sC0, sT))
        a('s_lshl_b32 s%d, s%d, 6' % (sC0, sC0))
        a('s_or_b32 s%d, s%d, 0x4b000000' % (sC0, sC0))
        a('s_lshl_b32 s%d, s%d, 11' % (sTmp, sIdx))
        a('s_add_u32 s%d, s%d, %d' % (sTmp, sTmp, Y_OFF))
        a('v_lshl_add_u32 v%d, v0, 2, s%d' % (vYg, sTmp))
        a('s_lshl3_add_u32 s%d, s%d, s%d' % (sTmp, sH, sIdx))
        a('s_cmp_ge_u32 s%d, 5' % sTmp)
        a('s_cbranch_scc1 L_noinit')
        a('v_mov_b32 v%d, 0' % vA)
        a('v_mov_b32 v%d, s%d' % (vA + 1, sC0))
        a('v_lshl_add_u32 v%d, v%d, 2, v%d' % (vT, vLane, vYg))
        a('s_mov_b32 exec_hi, 0')
        a('buffer_store_dwordx2 %s, v%d, %s, 0 offen sc1' % (vr(vA, 2), vT, srd(WS)), tag='init')
        a('s_mov_b64 exec, -1')
        a.label('L_noinit')

    def setup2():
        a.comment('addresses of the tail')
        a('s_mul_i32 s%d, s%d, %d' % (sTmp, sH, 128 * 1280))
        a('s_add_u32 s%d, s12, s%d' % (WO, sTmp))
        a('s_addc_u32 s%d, s13, 0' % (WO + 1))
        a('s_cmp_lt_u32 s%d, %d' % (sIdx, 0 if dbg_nowo else 5))
        a('s_cselect_b32 s%d, %d, 0' % (WO + 2, 128 * 1280))
        a('s_mov_b32 s%d, 0x20000' % (WO + 3))
        a('s_mov_b32 s%d, s14' % OUT)
        a('s_mov_b32 s%d, s15' % (OUT + 1))
        a('s_mov_b32 s%d, 2560' % (OUT + 2))
        a('s_mov_b32 s%d, 0x20000' % (OUT + 3))
        a('s_mov_b32 s%d, 0xaaaaaaaa' % sOdd)
        a('s_mov_b32 s%d, 0xaaaaaaaa' % (sOdd + 1))
        a('s_mov_b32 s4, 0x11111111')
        a('s_mov_b32 s5, 0x11111111')
        a('v_and_b32 v%d, 1, v%d' % (vT, vG))
        a('v_lshlrev_b32 v%d, 4, v%d' % (vT, vT))
        a('v_lshl_add_u32 v%d, v%d, 5, v%d' % (vT, vC, vT))
        a('s_mul_i32 s%d, s%d, %d' % (sTmp, sW, O_STRIDE))
        a('v_add_u32 v%d, s%d, v%d' % (vOw, sTmp, vT))
        a('v_bfe_u32 v%d, v0, 2, 2' % vT)
        a('v_and_b32 v%d, 1, v0' % (vT + 1))
        a('v_lshl_add_u32 v%d, v%d, 1, v%d' % (vT, vT, vT + 1))
        a('v_lshrrev_b32 v%d, 4, v0' % (vT + 1))
        a('v_mul_u32_u24 v%d, %d, v%d' % (vOr, O_STRIDE, vT))
        a('v_lshl_add_u32 v%d, v%d, 4, v%d' % (vOr, vT + 1, vOr))
        a('v_mul_u32_u24 v%d, 5120, v%d' % (vWO, vT + 1))
        a('v_mul_u32_u24 v%d, %d, v%d' % (vT, Y_STRIDE, vT))
        a('v_bfe_u32 v%d, v0, 1, 1' % (vT + 2))
        a('v_lshl_add_u32 v%d, v%d, 1, v%d' % (vCst, vT + 1, vT + 2))
        a('v_lshl_add_u32 v%d, v%d, 4, v%d' % (vYr, vCst, vT))
        a('s_mul_i32 s%d, s%d, %d' % (sTmp, sW, Y_STRIDE))
        a('v_add_u32 v%d, s%d, v%d' % (vYw, sTmp, vL16))
        a('v_bfe_u32 v%d, v0, 2, 1' % vT)
        a('v_bfe_u32 v%d, v0, 3, 1' % (vT + 1))
        a('v_lshl_add_u32 v%d, v%d, 1, v%d' % (vT + 2, vT, vT + 1))
        a('v_mov_b32 v%d, s%d' % (vOtag, sT0))
        a('v_mov_b32 v%d, s%d' % (vT, sT1))
        a('v_cmp_eq_u32 vcc, 1, v%d' % (vT + 2))
        a('v_cndmask_b32 v%d, v%d, v%d, vcc' % (vOtag, vOtag, vT))
        a('v_mov_b32 v%d, s%d' % (vT, sT2))
        a('v_cmp_eq_u32 vcc, 3, v%d' % (vT + 2))
        a('v_cndmask_b32 v%d, v%d, v%d, vcc' % (vOtag, vOtag, vT))
        a('s_lshl3_add_u32 s%d, s%d, s%d' % (sTmp, sH, sW))
        a('s_lshl_b32 s%d, s%d, 9' % (sTmp, sTmp))
        a('s_add_u32 s%d, s%d, %d' % (sTmp, sTmp, OX_OFF))
        a('v_lshrrev_b32 v%d, 3, v%d' % (vT, vC))
        a('v_and_b32 v%d, 3, v0' % (vT + 1))
        a('v_lshl_add_u32 v%d, v%d, 2, v%d' % (vT, vT, vT + 1))
        a('v_lshl_add_u32 v%d, v%d, 2, v%d' % (vT, vT, vG))
        a('v_lshl_add_u32 v%d, v%d, 4, s%d' % (vOg, vT, sTmp))
        a('s_lshl_b32 s%d, s%d, 6' % (sTmp2, sIdx))
        a('s_add_u32 s%d, s%d, s%d' % (sTmp, sTmp, sTmp2))
        a('v_lshl_add_u32 v%d, v%d, 2, v%d' % (vT, vG, vT + 2))
        a('v_lshl_add_u32 v%d, v%d, 2, s%d' % (vOs, vT, sTmp))
        a('v_lshl_add_u32 v%d, v%d, 4, v%d' % (vWO, vC, vWO))
        a('s_lshl_b32 s%d, s%d, 8' % (sTmp, sIdx))
        a('v_add_u32 v%d, s%d, v%d' % (vWO, sTmp, vWO))
        a('v_and_b32 v%d, 15, v%d' % (vT, vCst))
        a('v_bfe_u32 v%d, v%d, 4, 1' % (vT + 1, vCst))
        a('v_lshl_add_u32 v%d, v%d, 1, v%d' % (vT, vT, vT + 1))
        a('v_lshl_add_u32 v%d, v%d, 2, v%d' % (vT, vT, vT + 2))
        a('s_lshr_b32 s%d, s%d, 2' % (sTmp2, sW))
        a('s_mul_i32 s%d, s%d, 1280' % (sTmp2, sTmp2))
        a('s_add_u32 s%d, s%d, s%d' % (sTmp, sTmp, sTmp2))
        a('v_lshl_add_u32 v%d, v%d, 1, s%d' % (vCst, vT, sTmp))

    vPoll = vX + 4
    vS, vTT = vX, vX + 8
    pend = []
    bank_of = [0, 2, 1, 3]
    st = dict(polled=False, scaled=False, q=False, qg=False, qsum=False, qp=False)
    late = 2 if prescale else 0

    def qgather():
        for j in range(4):
            a('buffer_load_dwordx4 %s, v%d, %s, 0 offen offset:%d sc1' % (vr(vWb + 4 * j), vQg, srd(WS), 1024 * j),
              tag=('qg', j))

    def q_sum():
        a.comment('one wave sums the eight row-block products of this (batch, head) and shares q through LDS')
        a('s_cmp_lg_u32 s%d, %d' % (sW, gw))
        a('s_cbranch_scc1 L_q_skip')
        a.label('L_q_check')
        untag(vWb, 4, vT)
        a('v_cmp_ne_u32 vcc, 0, v%d' % vT)
        if not dbg_nox:
            a('s_cbranch_vccnz L_q_retry')
        a.label('L_q_ok')
        swap_reduce('v_add_f32', range(vWb, vWb + 4), range(vWb + 4, vWb + 8), 32)
        a('v_cvt_pk_bf16_f32 v%d, v%d, v%d' % (vWb, vWb, vWb + 1))
        a('v_cvt_pk_bf16_f32 v%d, v%d, v%d' % (vWb + 1, vWb + 2, vWb + 3))
        a('v_and_b32 v%d, 1, v%d' % (vT, vG))
        a('v_lshl_add_u32 v%d, v%d, 1, v%d' % (vT, vC, vT))
        a('v_lshlrev_b32 v%d, 3, v%d' % (vT, vT))
        a('v_mov_b32 v%d, 1' % (vT + 1))
        a('ds_write_b64 v%d, %s offset:%d' % (vT, vr(vWb, 2), LDS_Q))
        a('ds_write_b32 v%d, v%d offset:%d' % (vZero, vT + 1, LDS_F + 4))
        a.label('L_q_skip')

    def q_read():
        a('v_lshlrev_b32 v%d, 4, v%d' % (vT, vC))
        a.label('L_qr')
        a('ds_read_b32 v%d, v%d offset:%d' % (vT + 1, vZero, LDS_F + 4))
        a('ds_read_b128 %s, v%d offset:%d' % (vr(vQ), vT, LDS_Q))
        a('s_waitcnt lgkmcnt(0)')
        a('v_cmp_eq_u32 vcc, 0, v%d' % (vT + 1))
        a('s_cbranch_vccnz L_qr')
        stamp(2)

    def score(n):
        rb = vRing + 4 * (n % NS)
        s = vS + (n & 7)
        for k in range(4):
            a('v_dot2_f32_bf16 v%d, v%d, v%d, %s' % (s, rb + k, vQ + k, 'v%d' % s if k else '0'))
            if pend and k in (0, 2):
                pend.pop(0)()
        if n % 4 == 3:
            assert not pend
            s0 = vS + (n & 4)
            u = vU + n // 4
            pend.extend([
                lambda: dpp('v_add_f32', vTT, s0, s0, 'row_ror:8', 0x3),
                lambda: dpp('v_add_f32', vTT, s0 + 1, s0 + 1, 'row_ror:8', 0xc),
                lambda: dpp('v_add_f32', vTT + 1, s0 + 2, s0 + 2, 'row_ror:8', 0x3),
                lambda: dpp('v_add_f32', vTT + 1, s0 + 3, s0 + 3, 'row_ror:8', 0xc),
                lambda: dpp('v_add_f32', u, vTT, vTT, 'row_shl:4', 0x5),
                lambda: dpp('v_add_f32', u, vTT + 1, vTT + 1, 'row_shr:4', 0xa),
                lambda: dpp('v_add_f32', u, u, u, 'quad_perm:[1,0,3,2]'),
                lambda: dpp('v_add_f32', u, u, u, 'quad_perm:[2,3,0,1]'),
            ])

    def softmax():
        while pend:
            pend.pop(0)()
        stamp(3)
        a('v_max3_f32 v%d, v%d, v%d, v%d' % (vM, vU, vU + 1, vU + 2))
        a('v_max3_f32 v%d, v%d, v%d, v%d' % (vM, vM, vU + 3, vU + 4))
        a('v_max3_f32 v%d, v%d, v%d, v%d' % (vM, vM, vU + 5, vU + 6))
        a('v_max_f32 v%d, v%d, v%d' % (vM, vM, vU + 7))
        dpp('v_max_f32', vM, vM, vM, 'row_ror:4')
        dpp('v_max_f32', vM, vM, vM, 'row_ror:8')
        swap_reduce('v_max_f32', [vM], [vT], 16)
        swap_reduce('v_max_f32', [vM], [vT], 32)
        a('v_mul_f32 v%d, s%d, v%d' % (vM, sCS, vM))
        for k in range(8):
            a('v_fma_f32 v%d, v%d, s%d, -v%d' % (vU + k, vU + k, sCS, vM))
        for k in range(8):
            a('v_exp_f32 v%d, v%d' % (vU + k, vU + k))
        vML = vX
        a('v_add_f32 v%d, v%d, v%d' % (vML + 2, vU, vU + 1))
        for k in range(2, 8):
            a('v_add_f32 v%d, v%d, v%d' % (vML + 2, vML + 2, vU + k))
        for k in range(8 - late):
            a('v_cvt_pk_bf16_f32 v%d, v%d, v%d' % (vU + k, vU + k, vU + k))
        dpp('v_add_f32', vML + 2, vML + 2, vML + 2, 'row_ror:4')
        a('v_mov_b32 v%d, v%d' % (vML, vM))
        a('v_mov_b32 v%d, s%d' % (vML + 1, sT))
        dpp('v_add_f32', vML + 2, vML + 2, vML + 2, 'row_ror:8')
        a('v_mov_b32 v%d, s%d' % (vML + 3, sTX))
        swap_reduce('v_add_f32', [vML + 2], [vT], 16)
        swap_reduce('v_add_f32', [vML + 2], [vT], 32)
        if not dbg_noml:
            a('s_mov_b64 exec, 1')
            a('buffer_store_dwordx4 %s, v%d, %s, 0 offen sc1' % (vr(vML), vMLs, srd(WS)), tag='mlst')
            a('s_mov_b64 exec, -1')
        build_a(0)

    def build_a(i):
        for r in range(4):
            a('v_and_b32_dpp v%d, v%d, v%d row_newbcast:%d row_mask:0xf bank_mask:0xf' %
              (vA + 4 * (i & 1) + r, vU + i // 4, vMask + r, 4 * bank_of[i % 4]))

    def scale_code():
        a.comment('combine the 32 wave statistics of this (batch, head); compare the dies of the head group')
        a.label('L_ml_check')
        a('v_xor_b32 v%d, s%d, v%d' % (vT, sT, vPoll + 1))
        a('v_xor_b32 v%d, s%d, v%d' % (vT + 1, sTX, vPoll + 3))
        a('v_and_or_b32 v%d, v%d, -16, v%d' % (vT, vT + 1, vT))
        a('v_cmp_ne_u32 vcc, 0, v%d' % vT)
        if not dbg_noml:
            a('s_cbranch_vccnz L_ml_retry')
        a.label('L_ml_ok')
        a('v_cmp_ne_u32 s[%d:%d], 0, v%d' % (sFast, sFast + 1, vZero if dbg_noml else vT + 1))
        vMM = vT + 1
        dpp('v_max_f32', vMM, vPoll, vPoll, 'quad_perm:[1,0,3,2]')
        dpp('v_max_f32', vMM, vMM, vMM, 'quad_perm:[2,3,0,1]')
        dpp('v_max_f32', vMM, vMM, vMM, 'row_ror:4')
        dpp('v_max_f32', vMM, vMM, vMM, 'row_ror:8')
        swap_reduce('v_max_f32', [vMM], [vT], 16)
        a('v_sub_f32 v%d, v%d, v%d' % (vPoll, vPoll, vMM))
        a('v_sub_f32 v%d, v%d, v%d' % (vScale, vM, vMM))
        a('v_exp_f32 v%d, v%d' % (vPoll, vPoll))
        a('v_exp_f32 v%d, v%d' % (vScale, vScale))
        a('v_mul_f32 v%d, v%d, v%d' % (vPoll, vPoll, vPoll + 2))
        dpp('v_add_f32', vPoll, vPoll, vPoll, 'quad_perm:[1,0,3,2]')
        dpp('v_add_f32', vPoll, vPoll, vPoll, 'quad_perm:[2,3,0,1]')
        dpp('v_add_f32', vPoll, vPoll, vPoll, 'row_ror:4')
        dpp('v_add_f32', vPoll, vPoll, vPoll, 'row_ror:8')
        swap_reduce('v_add_f32', [vPoll], [vT], 16)
        a('v_rcp_f32 v%d, v%d' % (vPoll, vPoll))
        a('v_mul_f32 v%d, v%d, v%d' % (vScale, vScale, vPoll))
        a('v_readfirstlane_b32 s%d, v%d' % (sCS, vScale))
        for k in range(8 - late, 8):
            a('v_mul_f32 v%d, s%d, v%d' % (vU + k, sCS, vU + k))
        for k in range(8 - late, 8):
            a('v_cvt_pk_bf16_f32 v%d, v%d, v%d' % (vU + k, vU + k, vU + k))
        st['scaled'] = True

    def scale_acc():
        for r in range(4):
            a('v_mul_f32 v%d, s%d, v%d' % (vAcc + r, sCS, vAcc + r))

    def process(n):
        if n < 32:
            score(n)
            if n == 31:
                softmax()
            return
        i = n - 32
        if st['polled'] and not st['scaled'] and 'poll' not in [t for t, _ in a.vm]:
            scale_code()
        if late and i == 32 - 4 * late:
            scale_acc()
        a('v_mfma_f32_16x16x32_bf16 %s, %s, %s, %s' %
          (vr(vAcc), vr(vA + 4 * (i & 1)), vr(vRing + 4 * (n % NS)), vr(vAcc) if i else '0'))
        if i < 31:
            assert st['scaled'] or i + 1 < 32 - 4 * late
            build_a(i + 1)

    def inflight(tag):
        return tag in [t for t, _ in a.vm]

    Fs = Fs or {}
    issued, done, landed = cnt['k'], 0, 0
    while done < 64:
        if landed < 64:
            assert landed < issued
            a.wait_vm(('kv', landed))
            fstamp(landed)
            landed += 1
        while issued < 64 and issued - landed < Fs.get(issued, F):
            assert issued - done < NS
            if issued == gather_at:
                qgather()
                st['qg'] = True
            for at, r_ in ((pre_v, V), (pre_wo, WO), (pre_out, OUT)):
                if issued == at:
                    a('s_mov_b64 exec, 1')
                    a('buffer_load_dword v%d, v%d, %s, 0 offen nt' %
                      (vJunk, {V: vKV, WO: vWO, OUT: vZero}[r_], srd(r_)), tag=('pre', r_))
                    a('s_mov_b64 exec, -1')
            if issued == poll_at:
                assert done > 32
                if pre_ox:
                    a('buffer_load_dword v%d, v%d, %s, 0 offen sc1' % (vJunk, vOg, srd(WS)), tag='preox')
                if not dbg_noml:
                    a('buffer_load_dwordx4 %s, v%d, %s, 0 offen sc1' % (vr(vPoll), vMLl, srd(WS)), tag='poll')
                st['polled'] = True
            kv_load(issued)
            issued += 1
            if issued == setup_at[0]:
                assert st['qp']
                setup1()
            if issued == setup_at[1]:
                setup2()
        for t in range(4):
            if wo_land[t] == landed and ('wo', t) not in a.issued:
                a('buffer_load_dwordx4 %s, v%d, %s, 0 offen offset:%d%s' %
                  (vr(vWb + 4 * t), vWO, srd(WO), 1280 * t, wflag), tag=('wo', t))
        if not st['qp'] and not inflight(('wq', 2)) and not inflight(('x', 2)):
            q_partial()
            st['qp'] = True
        if st['qg'] and not st['qsum'] and not inflight(('qg', 3)):
            q_sum()
            st['qsum'] = True
        if not st['q']:
            if st['qsum'] and issued >= q_at:
                q_read()
                st['q'] = True
            continue
        for _ in range(catch):
            if done < landed:
                process(done)
                done += 1
    assert st['scaled']
    stamp(4)

    a('s_mov_b32 exec_hi, 0')
    a('s_cmp_eq_u64 s[%d:%d], 0' % (sFast, sFast + 1))
    if not late:
        scale_acc()
    a('ds_write_b128 v%d, %s offset:%d' % (vOw, vr(vAcc), LDS_O))
    a('s_mov_b64 exec, -1')
    a('s_waitcnt lgkmcnt(0)')
    a('s_barrier')
    vO = vU
    a('ds_read_b128 %s, v%d offset:%d' % (vr(vO), vOr, LDS_O))
    a('s_waitcnt lgkmcnt(0)')
    fold4(vO + 4, vO, vT)
    a('s_mov_b64 exec, s[4:5]')
    a('v_bfi_b32 v%d, v%d, v%d, v%d' % (vO + 4, vTag, vOtag, vO + 4))
    if fast:
        a('s_cbranch_scc0 L_o_far')
        a('buffer_store_dword v%d, v%d, %s, 0 offen' % (vO + 4, vOs, srd(WS)))
        a.label('L_o_sent')
    else:
        a('buffer_store_dword v%d, v%d, %s, 0 offen sc1' % (vO + 4, vOs, srd(WS)))
    for k in (1, 2, 3, 6):
        tstamp(k)
    a('s_mov_b64 exec, -1')
    a('s_cmp_ge_u32 s%d, 5' % sIdx)
    a('s_cbranch_scc1 L_not_proj')
    vP = vRing
    vPp = vRing + 32
    oload = lambda j: a('buffer_load_dwordx4 %s, v%d, %s, 0 offen sc1' % (vr(vPp + 4 * j), vOg, srd(WS)))
    for j in range(npoll - 1):
        oload(j)
        if pgap:
            a('s_sleep %d' % pgap)
    a.label('L_o_poll')
    for j in range(npoll):
        oload((j + npoll - 1) % npoll)
        a('s_waitcnt vmcnt(%d)' % (npoll - 1))
        b = vPp + 4 * j
        untag(b, 1, vT)
        for t in range(4):
            dpp('v_add_f32', vP + t, b + t, b + t, 'quad_perm:[1,0,3,2]')
            if t == 0:
                a('v_cmp_ne_u32 vcc, 0, v%d' % vT)
        if j < npoll - 1:
            a('s_cbranch_vccz L_o_ok')
        else:
            a('s_cbranch_vccnz L_o_retry')
    a.vm = []
    a.label('L_o_ok')
    tstamp(3)
    for t in range(4):
        dpp('v_add_f32', vP + t, vP + t, vP + t, 'quad_perm:[2,3,0,1]')
    for t in range(4):
        a('v_cvt_pk_bf16_f32 v%d, v%d, v%d' % (vP + t, vP + t, vP + t))
    vA2 = vRing + 4
    for t in range(4):
        for r in range(4):
            a('v_and_b32 v%d, v%d, v%d' % (vA2 + 4 * t + r, vP + t, vMask + r))
            if t and r == 1:
                a('v_mfma_f32_16x16x32_bf16 %s, %s, %s, %s' %
                  (vr(vAcc), vr(vA2 + 4 * t - 4), vr(vWb + 4 * t - 4), vr(vAcc) if t > 1 else '0'))
    a('v_mfma_f32_16x16x32_bf16 %s, %s, %s, %s' % (vr(vAcc), vr(vA2 + 12), vr(vWb + 12), vr(vAcc)))
    a('ds_write_b128 v%d, %s offset:%d' % (vYw, vr(vAcc), LDS_Y))
    a('s_waitcnt lgkmcnt(0)')
    a('s_barrier')
    tstamp(6)
    a('ds_read_b128 %s, v%d offset:%d' % (vr(vP), vYr, LDS_Y))
    a('s_waitcnt lgkmcnt(0)')
    vY, vR = vP + 4, vP + 5
    fold4(vY, vP, vT)
    sO = 's[%d:%d]' % (sOdd, sOdd + 1)
    a.label('L_acc')
    a('v_cndmask_b32 v%d, v%d, 1.0, %s' % (vR, vY, sO))
    a('buffer_atomic_add_f32 v%d, v%d, %s, 0 offen sc0' % (vR, vYg, srd(WS)))
    tstamp(2)
    a('s_waitcnt vmcnt(0)')
    a('v_subrev_u32 v%d, s%d, v%d' % (vT, sC0, vR))
    a('v_add_f32 v%d, v%d, v%d' % (vR, vR, vY))
    a('v_cmp_eq_u32 vcc, 31, v%d' % vT)
    a('v_cmp_lt_u32 s[8:9], 31, v%d' % vT)
    a('v_cvt_pk_bf16_f32 v%d, v%d, v%d' % (vR, vR, vR))
    a('s_and_b64 vcc, vcc, %s' % sO)
    a('s_lshr_b64 exec, vcc, 1')
    a('s_cbranch_execz L_acc_done')
    a('buffer_store_short v%d, v%d, %s, 0 offen' % (vR, vCst, srd(OUT)))
    a.label('L_acc_done')
    a('s_and_b64 exec, s[8:9], %s' % sO)
    a('s_cbranch_execnz L_acc_early')
    if stamps:
        a('s_mov_b64 exec, -1')
        a('s_branch L_fin')
    else:
        a('s_endpgm')
    a.label('L_acc_early')
    a('buffer_load_dword v%d, v%d, %s, 0 offen sc1' % (vR, vYg, srd(WS)))
    a('s_waitcnt vmcnt(0)')
    a('v_subrev_u32 v%d, s%d, v%d' % (vT, sC0, vR))
    a('v_cmp_lt_u32 vcc, 31, v%d' % vT)
    a('s_sub_u32 s%d, s%d, 1' % (sSpin, sSpin))
    a('s_cbranch_scc1 L_end')
    a('s_cbranch_vccnz L_acc_early')
    a('s_lshr_b64 s[8:9], exec, 1')
    a('s_or_b64 exec, exec, s[8:9]')
    a('s_branch L_acc')
    a.label('L_o_retry')
    if osleep:
        a('s_sleep %d' % osleep)
    a('s_sub_u32 s%d, s%d, 1' % (sSpin, sSpin))
    a('s_cbranch_scc0 L_o_poll')
    a('s_branch L_o_ok')
    if fast:
        a.label('L_o_far')
        a('buffer_store_dword v%d, v%d, %s, 0 offen sc1' % (vO + 4, vOs, srd(WS)))
        a('s_branch L_o_sent')

    a.label('L_ml_retry')
    a('s_sub_u32 s%d, s%d, 1' % (sSpin, sSpin))
    a('s_cbranch_scc1 L_ml_ok')
    a('buffer_load_dwordx4 %s, v%d, %s, 0 offen sc1' % (vr(vPoll), vMLl, srd(WS)))
    a('s_waitcnt vmcnt(0)')
    a('s_branch L_ml_check')

    a.label('L_q_retry')
    a('s_sub_u32 s%d, s%d, 1' % (sSpin, sSpin))
    a('s_cbranch_scc1 L_q_ok')
    qgather()
    a('s_waitcnt vmcnt(0)')
    a('s_branch L_q_check')

    a.label('L_not_proj')
    a('s_lshl3_add_u32 s%d, s2, s%d' % (sTmp, sW))
    a('s_cmp_lg_u32 s%d, 0x7f8' % sTmp)
    a('s_cbranch_scc1 L_fin')
    a('v_lshlrev_b32 v%d, 9, v%d' % (vT + 1, vLane))
    a('v_and_b32 v%d, 0x7000, v%d' % (vT, vT + 1))
    a('v_add_u32 v%d, v%d, v%d' % (vT + 1, vT + 1, vT))
    a.label('L_ep_poll')
    for n in range(4):
        a('s_mov_b32 s4, %d' % (QX_OFF + 65536 * n))
        a('buffer_load_dwordx4 %s, v%d, %s, s4 offen sc1' % (vr(vP + 4 * n), vT + 1, srd(WS)))
    a('s_waitcnt vmcnt(0)')
    untag(vP, 4, vT)
    a('v_cmp_ne_u32 vcc, 0, v%d' % vT)
    a('s_cbranch_vccz L_ep_ok')
    if not dbg_nox:
        a('s_sub_u32 s%d, s%d, 1' % (sSpin, sSpin))
        a('s_cbranch_scc0 L_ep_poll')
    a.label('L_ep_ok')
    a('v_mov_b32 v%d, s%d' % (vT, sT))
    a('s_mov_b64 exec, 1')
    a('buffer_store_dword v%d, v%d, %s, 0 offen sc1' % (vT, vZero, srd(WS)))
    a('s_mov_b64 exec, -1')
    a.label('L_fin')
    if stamps:
        stamp(5)
        a('s_waitcnt vmcnt(0)')
        stamp(6)
        if fine:
            regs, sh = [3, 12, 12, 14, sSpin] + [sStamp + 2 * j for j in range(16)], 7
            a('s_getreg_b32 s14, hwreg(HW_REG_XCC_ID)')
        else:
            regs, sh = [sStamp + k for k in range(16)], 6
            a('s_getreg_b32 s%d, hwreg(HW_REG_XCC_ID)' % (sStamp + 14))
            a('s_mov_b32 s%d, s%d' % (sStamp + 15, sSpin))
        a('s_waitcnt lgkmcnt(0)')
        a('v_mov_b32 v%d, 0' % vT)
        for k, r in enumerate(regs):
            a('v_writelane_b32 v%d, s%d, %d' % (vT, r, k))
        a('s_lshl3_add_u32 s%d, s2, s%d' % (sTmp, sW))
        a('s_lshl_b32 s%d, s%d, %d' % (sTmp, sTmp, sh))
        a('s_add_u32 s%d, s%d, 0x%x' % (sTmp, sTmp, STAMP_OFF))
        a('v_lshlrev_b32 v%d, 2, v%d' % (vT + 1, vLane))
        a('s_mov_b32 exec_hi, 0')
        if not fine:
            a('s_mov_b32 exec_lo, 0xffff')
        a('buffer_store_dword v%d, v%d, %s, s%d offen' % (vT, vT + 1, srd(WS), sTmp))
    a.label('L_end')
    a('s_endpgm')

    out = HEADER
    out += '; @launch grid=(256,1,1) block=(512,1,1) lds=%d\n' % LDS_BYTES
    out += '.amdgcn_target "amdgcn-amd-amdhsa--gfx950"\n.text\n.globl %s_kernel\n.p2align 8\n' % NAME
    out += '.type %s_kernel,@function\n%s_kernel:\n' % (NAME, NAME)
    out += a.text()
    out += '''.section .rodata,"a"
.p2align 6
.amdhsa_kernel %s_kernel
  .amdhsa_next_free_vgpr 256
  .amdhsa_next_free_sgpr 102
  .amdhsa_accum_offset 256
  .amdhsa_group_segment_fixed_size 0
  .amdhsa_kernarg_size 64
  .amdhsa_user_sgpr_count 2
  .amdhsa_user_sgpr_kernarg_segment_ptr 1
  .amdhsa_system_sgpr_workgroup_id_x 1
  .amdhsa_float_denorm_mode_32 3
.end_amdhsa_kernel
''' % NAME
    return out


if __name__ == '__main__':
    kw = {}
    for arg in sys.argv[2:]:
        k, v = arg.split('=', 1)
        kw[k] = eval(v)
    text = gen(**kw)
    open(sys.argv[1], 'w').write(text)
```
